```python
import torch

def _softmax(x, axis=-1):
    return torch.softmax(x, dim=axis)

def _gelu(x):
    return torch.nn.functional.gelu(x, approximate='tanh')

def _silu(x):
    return torch.nn.functional.silu(x)

def _sigmoid(x):
    return torch.sigmoid(x)

def _layernorm(x, axis=-1, eps=1e-05):
    m = x.mean(dim=axis, keepdim=True)
    v = x.var(dim=axis, keepdim=True, unbiased=False)
    return (x - m) / torch.sqrt(v + eps)

def _scatter_add(tgt, idx, src, axis=0):
    return tgt.clone().index_add_(axis, idx, src)

def _segment_sum(src, seg, n):
    out = torch.zeros((n,) + src.shape[1:], dtype=src.dtype)
    return out.index_add_(0, seg, src)

def _pad(x, pw):
    flat = tuple((v for pair in reversed(pw) for v in pair))
    return torch.nn.functional.pad(x, flat)
kernel_name = 'sequential_preLN__memory_aug_recurrent_mem_tr__dense_activation_relu__prompt'

def setup_inputs():

    _w = lambda a: (lambda t: t.to(torch.bfloat16) if t.is_floating_point() else t)(torch.as_tensor(a))

    def _A_setup():
        B, S, Dm = (1, 2048, 512)
        H, Dh = (32, 128)
        M, seg = (8, 32)
        seg = min(seg, S)
        S = S // seg * seg
        return {'x': _w((lambda *s: torch.randn(*s, dtype=torch.bfloat16) * 0.05)(B, S, Dm)), 'mem0': _w((lambda *s: torch.randn(*s, dtype=torch.bfloat16) * 0.2)(B, M, Dm)), 'Wq': _w((lambda *s: torch.randn(*s, dtype=torch.bfloat16) * 1.6)(Dm, H, Dh) * Dm ** (-0.5)), 'Wk': _w((lambda *s: torch.randn(*s, dtype=torch.bfloat16) * 1.6)(Dm, H, Dh) * Dm ** (-0.5)), 'Wv': _w((lambda *s: torch.randn(*s, dtype=torch.bfloat16) * 0.2)(Dm, H, Dh) * Dm ** (-0.5)), 'Wo': _w((lambda *s: torch.randn(*s, dtype=torch.bfloat16) * 0.2)(H, Dh, Dm) * (H * Dh) ** (-0.5)), 'seg_len': seg}
    _A_in = _A_setup()

    def _B_setup():
        B, S, D, Dff = (1, 2048, 512, 1792)
        return {'x': _w((lambda *s: torch.randn(*s, dtype=torch.bfloat16) * 0.05)(B, S, D)), 'w1': _w((lambda *s: torch.randn(*s, dtype=torch.bfloat16) * 0.05)(D, Dff)), 'w2': _w((lambda *s: torch.randn(*s, dtype=torch.bfloat16) * 0.05)(Dff, D))}
    _B_in = _B_setup()
    return {'A_x': _A_in['x'], 'A_mem0': _A_in['mem0'], 'A_Wq': _A_in['Wq'], 'A_Wk': _A_in['Wk'], 'A_Wv': _A_in['Wv'], 'A_Wo': _A_in['Wo'], 'A_seg_len': _A_in['seg_len'], 'B_x': _B_in['x'], 'B_w1': _B_in['w1'], 'B_w2': _B_in['w2']}

def reference(A_x, A_mem0, A_Wq, A_Wk, A_Wv, A_Wo, A_seg_len, B_x, B_w1, B_w2):

    def _A_ref(x, mem0, Wq, Wk, Wv, Wo, seg_len):
        B, S, Dm = x.shape
        H, Dh = (Wq.shape[1], Wq.shape[2])
        M = mem0.shape[1]
        scale = Dh ** (-0.5)
        n_seg = S // seg_len
        L = M + seg_len
        idx = torch.arange(L)
        mask = (idx[:, None] < M) | (idx[:, None] >= idx[None, :])
        mem = mem0
        outs = []
        for s in range(n_seg):
            xs = x[:, s * seg_len:(s + 1) * seg_len, :].clone()
            h = torch.concatenate([mem, xs], axis=1)
            q = torch.einsum('btd,dhe->bhte', h, Wq)
            k = torch.einsum('btd,dhe->bhte', h, Wk)
            v = torch.einsum('btd,dhe->bhte', h, Wv)
            scores = torch.einsum('bhqe,bhke->bhqk', q, k) * scale
            scores = torch.where(mask[None, None], scores, -1000000000.0)
            p = _softmax(scores, axis=-1)
            o = torch.einsum('bhqk,bhke->bhqe', p, v)
            o = torch.einsum('bhte,hed->btd', o, Wo)
            mem = o[:, :M, :].clone()
            outs.append(o[:, M:, :])
        return torch.concatenate(outs, axis=1)

    def _B_ref(x, w1, w2):
        h = torch.einsum('bsd,df->bsf', x, w1)
        zero = torch.zeros_like(h)
        h = torch.maximum(h, zero)
        return torch.einsum('bsf,fd->bsd', h, w2)
    x = A_x
    h = x + _A_ref(_layernorm(x, axis=-1), A_mem0, A_Wq, A_Wk, A_Wv, A_Wo, A_seg_len)
    h2 = h + _B_ref(_layernorm(h, axis=-1), B_w1, B_w2)
    return h2
```

```python
class Asm:
    def __init__(self):
        self.lines = []
        self.uid = 0
    def e(self, *ls):
        for s in ls:
            for t in s.split("\n"):
                self.lines.append("    " + t.strip() if t.strip() and not t.strip().endswith(":") else t.strip())
    def c(self, s):
        self.lines.append("    ; " + s)
    def raw(self, s):
        self.lines.append(s)
    def label(self, base):
        self.uid += 1
        return f"L_{base}_{self.uid}"
    def put(self, lab):
        self.lines.append(lab + ":")
    def text(self):
        import re
        for l in self.lines:
            t = l.strip()
            m = re.search(r"\boffset:(\d+)", t)
            if m:
                lim = 4096 if t.startswith(("buffer_", "global_")) else 65536
                assert int(m.group(1)) < lim, f"immediate offset out of range: {t}"
            for m in re.finditer(r"\boffset[01]:(\d+)", t):
                assert int(m.group(1)) < 256, f"immediate offset out of range: {t}"
        return "\n".join(self.lines) + "\n"

def vr(a, n=1):
    return f"v{a}" if n == 1 else f"v[{a}:{a+n-1}]"
def ar(a, n=1):
    return f"a{a}" if n == 1 else f"a[{a}:{a+n-1}]"
def sr(a, n=1):
    return f"s{a}" if n == 1 else f"s[{a}:{a+n-1}]"

def kernel_header(A, name):
    A.raw(f".globl {name}")
    A.raw(".p2align 8")
    A.raw(f".type {name},@function")
    A.raw(f"{name}:")

def kernel_desc(name, vgpr, accum, sgpr=102):
    return f""".p2align 6
.amdhsa_kernel {name}
  .amdhsa_next_free_vgpr {vgpr}
  .amdhsa_next_free_sgpr {sgpr}
  .amdhsa_accum_offset {accum}
  .amdhsa_group_segment_fixed_size 0
  .amdhsa_kernarg_size 104
  .amdhsa_user_sgpr_count 2
  .amdhsa_user_sgpr_kernarg_segment_ptr 1
  .amdhsa_system_sgpr_workgroup_id_x 1
  .amdhsa_float_denorm_mode_32 3
  .amdhsa_float_denorm_mode_16_64 3
.end_amdhsa_kernel
"""

def srd(A, d, base, nbytes):
    A.e(f"s_mov_b32 s{d}, s{base}", f"s_and_b32 s{d+1}, s{base+1}, 0xffff",
        f"s_mov_b32 s{d+2}, {nbytes:#x}", f"s_mov_b32 s{d+3}, 0x20000")
```

```python
from asmlib import *
from layout import *

def nop(A, n):
    while n > 0:
        k = min(n, 16)
        A.e(f"s_nop {k-1}")
        n -= k

sDBG, sWSP = 4, 6
SWS = 8
SWQ, SWK, SWV, SWO, SM0 = 12, 16, 20, 24, 28
sW, sH, sMODE, sS = 32, 33, 34, 35
sAGR, sAGW, sAGZ, sRSW, sRSR, sRSR1, sRSZ = 36, 37, 38, 39, 40, 41, 42
sKXS, sVXS, sKM, sVM, sM0KX = 43, 54, 55, 56, 57
sT0, sT1, sT2, sT3 = 58, 59, 60, 61
sC = 62
CTL_WIN, CTL_SLOW, CTL_BAR = 64, 68, 72

vIDX = 1
vLIN, vRSL, vRSS, vAGS, vKMS, vVMS = 2, 3, 4, 5, 6, 7
vSEL = 8
vAGW0, vAGW1, vAGRe, vAGRo = 12, 13, 14, 15
vQW, vQR0, vQR1, vOW = 16, 17, 18, 19
vKX = 20
vOR0, vOR1, vWO0, vWO1 = 24, 25, 26, 27
vPM = 28
vVM0, vVM1 = 30, 32
vM = 36
vAQ, vAK, vAV = 68, 76, 84
vVXc, vVXn = 92, 100
vP = 108
WV0 = 128

def wq(t, ks): return ar((t * 8 + ks) * 8, 8)
def wk(t, ks): return ar(128 + (t * 8 + ks) * 8, 8)
def wv(t, ks): return vr(WV0 + (t * 8 + ks) * 8, 8)

def election(A, exit_label):
    A.c("---- role election: counters live in d_debug (zero at launch)")
    skip = A.label("elect_skip"); poll = A.label("elect_poll"); got = A.label("elect_got")
    nocas = A.label("elect_nocas"); slow = A.label("elect_slow"); done = A.label("elect_done"); noto = A.label("elect_noto")
    A.e(f"s_cmp_lg_u32 s{sW}, 0", f"s_cbranch_scc1 {skip}")
    A.e(f"s_getreg_b32 s{sT0}, hwreg(HW_REG_XCC_ID)", f"s_and_b32 s{sT0}, s{sT0}, 15")
    A.e("s_mov_b64 exec, 1")
    A.e(f"s_lshl_b32 s{sT1}, s{sT0}, 2", f"v_mov_b32 v40, s{sT1}", "v_mov_b32 v41, 1", "v_mov_b32 v44, 0")
    A.e(f"global_atomic_add v42, v40, v41, s[{sDBG}:{sDBG+1}] sc0", "s_waitcnt vmcnt(0)", "s_nop 0")
    A.e(f"v_readfirstlane_b32 s{sT1}, v42")
    A.e("s_nop 3")
    A.e(f"s_cmp_lg_u32 s{sT1}, 31", f"s_cbranch_scc1 {nocas}")
    A.e(f"s_add_u32 s{sT2}, s{sT0}, 1", f"v_mov_b32 v42, s{sT2}", "v_mov_b32 v43, 0")
    A.e(f"global_atomic_cmpswap v44, v[42:43], s[{sDBG}:{sDBG+1}] offset:{CTL_WIN}", "s_waitcnt vmcnt(0)", "v_mov_b32 v44, 0")
    A.put(nocas)
    A.e(f"s_mov_b32 s{sT3}, 0")
    A.put(poll)
    A.e(f"global_load_dword v42, v44, s[{sDBG}:{sDBG+1}] offset:{CTL_WIN} sc1", "s_waitcnt vmcnt(0)", "s_nop 0")
    A.e(f"v_readfirstlane_b32 s{sT2}, v42", "s_nop 3")
    A.e(f"s_cmp_lg_u32 s{sT2}, 0", f"s_cbranch_scc1 {got}")
    A.e(f"s_add_u32 s{sT3}, s{sT3}, 1", f"s_cmp_lt_u32 s{sT3}, 4096", f"s_cbranch_scc0 {noto}", "s_sleep 2", f"s_branch {poll}")
    A.put(noto)
    A.c("no XCD gathered 32 workgroups in time: switch every workgroup to the placement-independent mode")
    A.e("v_mov_b32 v42, 0x100", "v_mov_b32 v43, 0")
    A.e(f"global_atomic_cmpswap v44, v[42:43], s[{sDBG}:{sDBG+1}] offset:{CTL_WIN}", "s_waitcnt vmcnt(0)", "v_mov_b32 v44, 0")
    A.e(f"s_mov_b32 s{sT3}, 0", f"s_branch {poll}")
    A.put(got)
    A.e(f"s_cmp_eq_u32 s{sT2}, 0x100", f"s_cbranch_scc1 {slow}")
    A.e(f"s_mov_b32 s{sMODE}, 1", f"s_sub_u32 s{sT2}, s{sT2}, 1", f"s_mov_b32 s{sH}, -1")
    A.e(f"s_cmp_lg_u32 s{sT2}, s{sT0}", f"s_cbranch_scc1 {done}")
    A.e(f"s_cmp_ge_u32 s{sT1}, 32", f"s_cbranch_scc1 {done}")
    A.e(f"s_mov_b32 s{sH}, s{sT1}", f"s_branch {done}")
    A.put(slow)
    A.e(f"s_mov_b32 s{sMODE}, 2")
    A.e(f"global_atomic_add v42, v44, v41, s[{sDBG}:{sDBG+1}] offset:{CTL_SLOW} sc0", "s_waitcnt vmcnt(0)", "s_nop 0")
    A.e(f"v_readfirstlane_b32 s{sT1}, v42", "s_nop 3")
    A.e(f"s_mov_b32 s{sH}, -1", f"s_cmp_ge_u32 s{sT1}, 32", f"s_cbranch_scc1 {done}", f"s_mov_b32 s{sH}, s{sT1}")
    A.put(done)
    A.e(f"v_mov_b32 v42, s{sH}", f"v_mov_b32 v43, s{sMODE}", "v_mov_b32 v44, 0", "ds_write_b64 v44, v[42:43]", "s_waitcnt lgkmcnt(0)")
    A.e("s_mov_b64 exec, -1")
    A.put(skip)
    A.e("s_barrier")
    A.e("v_mov_b32 v44, 0", "ds_read_b64 v[42:43], v44", "s_waitcnt lgkmcnt(0)", "s_nop 0")
    A.e(f"v_readfirstlane_b32 s{sH}, v42", f"v_readfirstlane_b32 s{sMODE}, v43", "s_nop 3")
    A.e("s_barrier")
    A.e(f"s_cmp_eq_u32 s{sH}, -1", f"s_cbranch_scc1 {exit_label}")

def lane_consts(A):
    A.c("---- per-lane constants; v40=l v41=i v42=g")
    A.e("v_and_b32 v40, 63, v0", "v_and_b32 v41, 15, v0", "v_lshrrev_b32 v42, 4, v40")
    A.e("v_lshrrev_b32 v43, 1, v41", "v_and_b32 v43, 1, v43")
    A.e("v_lshrrev_b32 v44, 2, v41", "v_lshlrev_b32 v44, 1, v44", "v_and_b32 v45, 1, v41", "v_add_u32 v44, v44, v45")
    A.e(f"v_mov_b32 v{vIDX}, 0x4444", "v_mov_b32 v46, 0xeeee", "v_cmp_eq_u32 vcc, 1, v43", "s_nop 1", f"v_cndmask_b32 v{vIDX}, v{vIDX}, v46, vcc")
    A.e("v_mov_b32 v46, 0x3f80", "v_mov_b32 v47, 0x3f800000", "v_cmp_eq_u32 vcc, 1, v45", "s_nop 1", f"v_cndmask_b32 v{vSEL}, v46, v47, vcc")
    for k in range(1, 4): A.e(f"v_mov_b32 v{vSEL+k}, v{vSEL}")
    A.e(f"s_lshl_b32 s{sT0}, s{sW}, 11", f"v_lshlrev_b32 v{vLIN}, 4, v40", f"v_add_u32 v{vLIN}, s{sT0}, v{vLIN}")
    A.e(f"s_lshl_b32 s{sT0}, s{sW}, 6", f"v_lshlrev_b32 v{vRSL}, 10, v42", f"v_lshl_add_u32 v{vRSL}, v41, 2, v{vRSL}", f"v_add_u32 v{vRSL}, s{sT0}, v{vRSL}")
    A.e(f"s_lshl_b32 s{sT0}, s{sW}, 16", f"s_lshl_b32 s{sT1}, s{sH}, 8", f"s_add_u32 s{sT0}, s{sT0}, s{sT1}",
        f"v_lshlrev_b32 v{vRSS}, 2, v40", f"v_add_u32 v{vRSS}, s{sT0}, v{vRSS}")
    A.e(f"s_lshl_b32 s{sT0}, s{sW}, 11", f"s_lshr_b32 s{sT1}, s{sH}, 2", f"s_lshl_b32 s{sT1}, s{sT1}, 7", f"s_add_u32 s{sT0}, s{sT0}, s{sT1}",
        f"s_and_b32 s{sT1}, s{sH}, 3", f"s_lshl_b32 s{sT1}, s{sT1}, 5", f"s_add_u32 s{sT0}, s{sT0}, s{sT1}",
        f"v_lshlrev_b32 v{vAGS}, 10, v45", f"v_lshl_add_u32 v{vAGS}, v42, 2, v{vAGS}", f"v_add_u32 v{vAGS}, s{sT0}, v{vAGS}",
        "v_mov_b32 v46, 0x70000000", "v_cmp_gt_u32 vcc, 2, v41", "s_nop 1", f"v_cndmask_b32 v{vAGS}, v46, v{vAGS}, vcc")
    A.e(f"s_lshl_b32 s{sT0}, s{sW}, 6", f"v_lshlrev_b32 v{vKMS}, 8, v44", f"v_lshl_add_u32 v{vKMS}, v42, 4, v{vKMS}", f"v_add_u32 v{vKMS}, s{sT0}, v{vKMS}",
        "v_cmp_eq_u32 vcc, 0, v43", "s_nop 1", f"v_cndmask_b32 v{vKMS}, v46, v{vKMS}, vcc")
    A.e(f"s_lshl_b32 s{sT0}, s{sW}, 9", f"v_lshlrev_b32 v{vVMS}, 4, v41", f"v_lshl_add_u32 v{vVMS}, v42, 2, v{vVMS}", f"v_add_u32 v{vVMS}, s{sT0}, v{vVMS}")
    A.e(f"s_lshl_b32 s{sT0}, s{sW}, 1", f"s_and_b32 s{sT1}, s{sT0}, 3", f"s_lshl_b32 s{sT1}, s{sT1}, 2",
        f"v_xor_b32 v46, s{sT1}, v40", f"v_lshlrev_b32 v{vAGW0}, 4, v46",
        f"s_lshl_b32 s{sT0}, s{sT0}, 10", f"s_add_u32 s{sT0}, s{sT0}, {L_MB}", f"v_add_u32 v{vAGW0}, s{sT0}, v{vAGW0}",
        f"v_xor_b32 v{vAGW1}, 64, v{vAGW0}", f"v_add_u32 v{vAGW1}, 1024, v{vAGW1}")
    A.e("v_lshlrev_b32 v46, 1, v42", "v_add_u32 v46, v46, v43",
        "v_and_b32 v47, 1, v44", "v_lshlrev_b32 v47, 2, v47", "v_xor_b32 v46, v46, v47", "v_lshlrev_b32 v46, 4, v46",
        "v_lshrrev_b32 v47, 1, v44", "v_and_b32 v47, 1, v47", "v_lshlrev_b32 v47, 7, v47",
        "v_lshlrev_b32 v48, 10, v44", "v_add_u32 v48, v48, v46", f"v_add_u32 v48, {L_MB}, v48",
        f"v_add_u32 v{vAGRe}, v48, v47", f"v_sub_u32 v{vAGRo}, v48, v47")
    A.e("v_lshlrev_b32 v48, 8, v44", "v_add_u32 v48, v48, v46", "v_add_u32 v48, v48, v47", f"v_add_u32 v{vOR0}, {L_MB}, v48",
        f"v_xor_b32 v{vOR1}, 128, v{vOR0}")
    A.e(f"s_lshr_b32 s{sT0}, s{sW}, 1", f"s_lshl_b32 s{sT0}, s{sT0}, 3", f"s_and_b32 s{sT1}, s{sW}, 1", f"s_lshl_b32 s{sT1}, s{sT1}, 2", f"s_add_u32 s{sT0}, s{sT0}, s{sT1}",
        f"v_add_u32 v46, s{sT0}, v43", "v_and_b32 v47, 3, v44", "v_lshlrev_b32 v47, 2, v47", "v_xor_b32 v46, v46, v47", "v_lshlrev_b32 v46, 4, v46",
        "v_lshlrev_b32 v47, 8, v44", "v_add_u32 v46, v46, v47", "v_lshl_add_u32 v46, v42, 2, v46", f"v_add_u32 v{vOW}, {L_MB}, v46")
    A.e(f"s_lshl_b32 s{sT0}, s{sW}, 10", "v_lshlrev_b32 v46, 5, v41", "v_lshrrev_b32 v47, 3, v41", "v_lshlrev_b32 v47, 7, v47", "v_xor_b32 v46, v46, v47",
        "v_lshl_add_u32 v46, v42, 3, v46", f"v_add_u32 v46, s{sT0}, v46", f"v_add_u32 v{vQW}, {L_Q}, v46")
    A.e("v_lshlrev_b32 v46, 8, v42", "v_lshrrev_b32 v47, 2, v41", "v_lshl_add_u32 v46, v47, 5, v46", "v_and_b32 v47, 3, v41", "v_lshl_add_u32 v46, v47, 3, v46",
        "v_and_b32 v47, 1, v42", "v_lshl_add_u32 v46, v47, 7, v46", f"v_add_u32 v{vQR0}, {L_Q}, v46", f"v_xor_b32 v{vQR1}, 128, v{vQR0}")
    for ks in range(4):
        A.e(f"v_or_b32 v46, {4*ks}, v42", "v_xor_b32 v46, v46, v41", "v_lshlrev_b32 v46, 4, v46", "v_lshl_add_u32 v46, v41, 8, v46", f"v_add_u32 v{vKX+ks}, {L_KX}, v46")
    A.e(f"s_lshl_b32 s{sT0}, s{sW}, 14", f"v_lshlrev_b32 v{vWO0}, 4, v40", f"v_add_u32 v{vWO0}, s{sT0}, v{vWO0}", f"v_add_u32 v{vWO1}, 0x10000, v{vWO0}")
    A.e(f"v_mov_b32 v{vPM+1}, 0", f"v_mov_b32 v{vVM0+1}, 0", f"v_mov_b32 v{vVM1+1}, 0")
    A.e(f"s_mov_b32 s{sC}, 0x3e0293ee")

def init_buffers(A, sc):
    A.c("---- sentinel init of this head's receive areas, m_0 from mem0")
    A.e("v_mov_b32 v48, -1", "v_mov_b32 v49, -1", "v_mov_b32 v50, -1", "v_mov_b32 v51, -1")
    A.e(f"s_lshl_b32 s{sT0}, s{sH}, 13", f"s_add_u32 s{sT0}, s{sT0}, {RS:#x}", f"s_add_u32 s{sT1}, s{sT0}, 0x40000")
    for so in (sT0, sT1):
        A.e(f"buffer_store_dwordx4 v[48:51], v{vLIN}, s[{SWS}:{SWS+3}], s{so} offen{sc}", f"buffer_store_dwordx4 v[48:51], v{vLIN}, s[{SWS}:{SWS+3}], s{so} offen offset:1024{sc}")
    for r in (1, 2):
        A.e(f"s_mov_b32 s{sT0}, {AG + r*8192:#x}")
        A.e(f"buffer_store_dword v48, v{vAGS}, s[{SWS}:{SWS+3}], s{sT0} offen{sc}", f"buffer_store_dword v48, v{vAGS}, s[{SWS}:{SWS+3}], s{sT0} offen offset:16{sc}")
    A.e(f"s_lshl_b32 s{sT0}, s{sW}, 11", f"s_lshl_b32 s{sT1}, s{sH}, 5", f"s_add_u32 s{sT0}, s{sT0}, s{sT1}",
        "v_lshlrev_b32 v46, 10, v45", "v_lshl_add_u32 v46, v42, 3, v46", f"v_add_u32 v46, s{sT0}, v46",
        f"buffer_load_dwordx2 v[52:53], v46, s[{SM0}:{SM0+3}], 0 offen", "s_waitcnt vmcnt(0)",
        "v_min_u32 v52, -2, v52", "v_min_u32 v53, -2, v53", f"s_mov_b32 s{sT0}, {AG:#x}",
        f"buffer_store_dword v52, v{vAGS}, s[{SWS}:{SWS+3}], s{sT0} offen{sc}", f"buffer_store_dword v53, v{vAGS}, s[{SWS}:{SWS+3}], s{sT0} offen offset:16{sc}")
    A.e("s_waitcnt vmcnt(0)", "s_barrier")
    skip = A.label("arrive_skip")
    A.e(f"s_cmp_lg_u32 s{sW}, 0", f"s_cbranch_scc1 {skip}", "s_mov_b64 exec, 1", "v_mov_b32 v46, 0", "v_mov_b32 v47, 1",
        f"global_atomic_add v46, v47, s[{sDBG}:{sDBG+1}] offset:{CTL_BAR}", "s_waitcnt vmcnt(0)", "s_mov_b64 exec, -1")
    A.put(skip)

def load_weights(A):
    A.c("---- weights: 16 chunks of 32 KiB through a 5-slot LDS ring")
    A.e("v_lshlrev_b32 v46, 13, v42", "v_lshl_add_u32 v46, v41, 4, v46")
    A.e("v_lshrrev_b32 v47, 5, v40", "v_lshlrev_b32 v47, 10, v47", "v_and_b32 v48, 31, v40", "v_lshl_add_u32 v47, v48, 4, v47")
    A.e("v_lshrrev_b32 v50, 2, v41", "v_lshl_add_u32 v50, v42, 3, v50", "v_and_b32 v51, 3, v41", "v_lshlrev_b32 v51, 3, v51",
        "v_lshl_add_u32 v48, v50, 8, v51", f"s_lshl_b32 s{sT0}, s{sW}, 6", f"v_add_u32 v48, s{sT0}, v48",
        "v_lshl_add_u32 v49, v50, 9, v51", f"s_lshl_b32 s{sT0}, s{sW}, 7", f"v_add_u32 v49, s{sT0}, v49",
        f"s_lshl_b32 s{sT0}, s{sW}, 13", "v_lshlrev_b32 v50, 4, v40", f"v_add_u32 v50, s{sT0}, v50")
    slot = lambda c: ((c + 3) % 5) * 32768
    def issue(c):
        if c < 12:
            s_ = (SWQ, SWK, SWV)[c // 4]; cc = c % 4
            A.e(f"s_lshl_b32 s{sT0}, s{sW}, 18", f"s_lshl_b32 s{sT1}, s{sH}, 8", f"s_add_u32 s{sT0}, s{sT0}, s{sT1}", f"s_add_u32 s{sT0}, s{sT0}, {128*cc*8192:#x}",
                f"s_lshl_b32 s{sT1}, s{sW}, 13", f"s_add_u32 s{sT1}, s{sT1}, {slot(c)}")
            for n in range(8):
                A.e(f"s_mov_b32 m0, s{sT1}", "s_nop 0", f"buffer_load_dwordx4 v46, s[{s_}:{s_+3}], s{sT0} offen lds")
                if n < 7: A.e(f"s_add_u32 s{sT0}, s{sT0}, 0x8000", f"s_add_u32 s{sT1}, s{sT1}, 1024")
        else:
            cc = c - 12; ksp = cc >> 1; cp = cc & 1
            A.e(f"s_lshl_b32 s{sT0}, s{sW}, 14", f"s_lshl_b32 s{sT1}, s{sH}, 17", f"s_add_u32 s{sT0}, s{sT0}, s{sT1}", f"s_add_u32 s{sT0}, s{sT0}, {64*ksp*1024 + cp*512:#x}",
                f"s_lshl_b32 s{sT1}, s{sW}, 13", f"s_add_u32 s{sT1}, s{sT1}, {slot(c)}")
            for n in range(8):
                A.e(f"s_mov_b32 m0, s{sT1}", "s_nop 0", f"buffer_load_dwordx4 v47, s[{SWO}:{SWO+3}], s{sT0} offen lds")
                if n < 7: A.e(f"s_add_u32 s{sT0}, s{sT0}, 0x800", f"s_add_u32 s{sT1}, s{sT1}, 1024")
    for c in range(4): issue(c)
    for c in range(16):
        A.e(f"s_waitcnt vmcnt({8 * (min(c + 3, 15) - c)})", "s_barrier")
        if c + 4 < 16: issue(c + 4)
        if c < 12:
            cc = c % 4
            A.e(f"v_add_u32 v51, {slot(c)}, v48")
            for kk in range(2):
                ks = 2 * cc + kk
                for t in range(2):
                    for u in range(4):
                        off = (64 * kk + 32 * (u >> 1) + 4 * (u & 1)) * 256 + t * 32
                        base = (t * 8 + ks) * 8 + 2 * u
                        dst = ar(base, 2) if c < 4 else ar(128 + base, 2) if c < 8 else vr(WV0 + base, 2)
                        A.e(f"ds_read_b64_tr_b16 {dst}, v51 offset:{off}")
            A.e("s_waitcnt lgkmcnt(0)")
        else:
            A.e(f"v_add_u32 v51, {slot(c)}, v49")
            for tl in range(4):
                for u in range(4):
                    off = (32 * (u >> 1) + 4 * (u & 1)) * 512 + tl * 32
                    A.e(f"ds_read_b64_tr_b16 {vr(64 + tl * 8 + 2 * u, 2)}, v51 offset:{off}")
            A.e("s_waitcnt lgkmcnt(0)", "s_barrier", f"v_add_u32 v51, {slot(c)}, v50")
            for tl in range(4):
                for u in range(2):
                    A.e(f"ds_write_b128 v51, {vr(64 + tl * 8 + 4 * u, 4)} offset:{tl * 2048 + u * 1024}")
            A.e("s_waitcnt lgkmcnt(0)")
    A.e("s_barrier")

PROF = False
NMARK = 9
sTM = 64
sACC = 82
MARKS = None
TOTAL = False
def mark(A, k):
    if PROF and (MARKS is None or k in MARKS): A.e(f"s_memtime s[{sTM+2*k}:{sTM+2*k+1}]")
def prof_init(A):
    if TOTAL: A.e("s_memtime s[90:91]", "s_waitcnt lgkmcnt(0)", "s_mov_b32 s88, 0", "s_mov_b32 s89, 0")
    if PROF:
        for k in range(NMARK + 1): A.e(f"s_mov_b32 s{sACC+k}, 0")
        A.e(f"s_memtime s[{sTM}:{sTM+1}]", "s_waitcnt lgkmcnt(0)", f"s_mov_b32 s92, s{sTM}")
def prof_step(A):
    if PROF:
        A.e("s_waitcnt lgkmcnt(0)")
        used = [k for k in range(NMARK) if MARKS is None or k in MARKS]
        prev = "s92"
        for k in used:
            A.e(f"s_sub_u32 s93, s{sTM+2*k}, {prev}", f"s_add_u32 s{sACC+k}, s{sACC+k}, s93")
            prev = f"s{sTM+2*k}"
        A.e(f"s_mov_b32 s92, {prev}")
def prof_out(A):
    if TOTAL:
        skip = A.label("totskip")
        A.e("s_memtime s[92:93]", "s_waitcnt lgkmcnt(0)", "s_sub_u32 s92, s92, s90")
        A.e(f"s_cmp_lg_u32 s{sW}, 0", f"s_cbranch_scc1 {skip}", f"s_cmp_lg_u32 s{sH}, 0", f"s_cbranch_scc1 {skip}")
        A.e("v_mov_b32 v40, 0", "v_mov_b32 v41, s92", f"global_store_dword v40, v41, s[{sDBG}:{sDBG+1}] offset:124")
        A.put(skip)
        A.e(f"s_lshl_b32 s93, s{sH}, 2", f"s_add_u32 s93, s93, s{sW}", "s_lshl_b32 s93, s93, 4", "s_add_u32 s93, s93, 0x04181000",
            "v_mov_b32 v40, 0", "v_mov_b32 v42, s88", "v_mov_b32 v43, s89", "v_mov_b32 v44, s92", "v_mov_b32 v45, 0", "s_mov_b64 exec, 1",
            "buffer_store_dwordx4 v[42:45], v40, s[8:11], s93 offen", "s_mov_b64 exec, -1")
    if PROF:
        skip = A.label("profskip")
        A.e(f"s_cmp_lg_u32 s{sW}, 0", f"s_cbranch_scc1 {skip}", f"s_cmp_lg_u32 s{sH}, 0", f"s_cbranch_scc1 {skip}")
        A.e("v_mov_b32 v40, 0")
        for k in range(NMARK):
            A.e(f"v_mov_b32 v41, s{sACC+k}", f"global_store_dword v40, v41, s[{sDBG}:{sDBG+1}] offset:{128+4*k}")
        A.e(f"v_mov_b32 v41, s{sPOLL}", f"global_store_dword v40, v41, s[{sDBG}:{sDBG+1}] offset:{128+4*NMARK}")
        A.put(skip)
sPOLL = 63
CNT = None
BACKOFF = 0
def retry(A, again, bail, cnt=None):
    ok = A.label("ok")
    A.e(f"s_cbranch_vccz {ok}")
    if cnt is not None and TOTAL: A.e(f"s_add_u32 s{cnt}, s{cnt}, 1")
    if cnt is not None and BACKOFF: A.e(f"s_nop {BACKOFF-1}")
    A.e(f"s_add_u32 s{sPOLL}, s{sPOLL}, 1", f"s_cmp_lt_u32 s{sPOLL}, 0x80000", f"s_cbranch_scc1 {again}", f"s_branch {bail}")
    A.put(ok)

def step_loop(A, sc, end_label):
    WS = f"s[{SWS}:{SWS+3}]"
    loop = A.label("step"); pa = A.label("poll_ag"); pr = A.label("poll_rs"); first = A.label("first")
    A.c("---- initial prefetch: K_x(0) -> buffer 0, V_x(0)")
    A.e(f"s_lshl_b32 s{sT0}, s{sH}, 13", f"s_add_u32 s{sKXS}, s{sT0}, {KB:#x}", f"s_add_u32 s{sVXS}, s{sT0}, {VT:#x}",
        f"s_lshl_b32 s{sT0}, s{sH}, 11", f"s_add_u32 s{sKM}, s{sT0}, {KM:#x}", f"s_add_u32 s{sVM}, s{sT0}, {VM:#x}",
        f"s_lshl_b32 s{sM0KX}, s{sW}, 11", f"s_add_u32 s{sM0KX}, s{sM0KX}, {L_KX}",
        f"s_mov_b32 m0, s{sM0KX}", "s_nop 0",
        f"buffer_load_dwordx4 v{vLIN}, {WS}, s{sKXS} offen lds", f"buffer_load_dwordx4 v{vLIN}, {WS}, s{sKXS} offen offset:1024 lds",
        f"buffer_load_dwordx4 {vr(vVXn,4)}, v{vLIN}, {WS}, s{sVXS} offen", f"buffer_load_dwordx4 {vr(vVXn+4,4)}, v{vLIN}, {WS}, s{sVXS} offen offset:1024")
    A.e(f"s_mov_b32 s{sS}, 0", f"s_mov_b32 s{sAGR}, {AG:#x}", f"s_mov_b32 s{sAGW}, {AG+8192:#x}", f"s_mov_b32 s{sAGZ}, {AG+16384:#x}",
        f"s_mov_b32 s{sRSW}, {RS:#x}", f"s_lshl_b32 s{sT0}, s{sH}, 13", f"s_add_u32 s{sRSR}, s{sT0}, {RS:#x}", f"s_add_u32 s{sRSR1}, s{sRSR}, 4096",
        f"s_add_u32 s{sRSZ}, s{sRSR}, 0x40000")
    A.c("wait for the other heads' buffer initialisation")
    wb = A.label("waitbar")
    A.put(wb)
    A.e("v_mov_b32 v46, 0", f"global_load_dword v47, v46, s[{sDBG}:{sDBG+1}] offset:{CTL_BAR} sc1", "s_waitcnt vmcnt(0)", "s_nop 0",
        f"v_readfirstlane_b32 s{sT0}, v47", "s_nop 3", f"s_cmp_lt_u32 s{sT0}, 32", "s_cselect_b64 vcc, -1, 0")
    retry(A, wb, end_label)
    prof_init(A)
    A.put(loop)
    A.c("---- AG poll: m_s")
    A.put(pa)
    P = vP
    A.e(f"buffer_load_dwordx4 {vr(P,4)}, v{vLIN}, {WS}, s{sAGR} offen sc1", f"buffer_load_dwordx4 {vr(P+4,4)}, v{vLIN}, {WS}, s{sAGR} offen offset:1024 sc1",
        "s_waitcnt vmcnt(0)",
        f"v_max3_u32 v{P+8}, v{P}, v{P+1}, v{P+2}", f"v_max3_u32 v{P+9}, v{P+3}, v{P+4}, v{P+5}", f"v_max3_u32 v{P+8}, v{P+8}, v{P+6}, v{P+7}",
        f"v_max_u32 v{P+8}, v{P+8}, v{P+9}", f"v_cmp_eq_u32 vcc, -1, v{P+8}")
    retry(A, pa, end_label)
    mark(A, 0)
    A.e(f"ds_write_b128 v{vAGW0}, {vr(P,4)}", f"ds_write_b128 v{vAGW1}, {vr(P+4,4)}", "s_waitcnt lgkmcnt(0)", "s_barrier")
    for ks in range(8):
        A.e(f"ds_read_b128 {vr(vM+4*ks,4)}, v{vAGRe if ks % 2 == 0 else vAGRo} offset:{ks*128}")
    A.c("resets of consumed exchange buffers, prefetch for the next step")
    A.e(f"v_mov_b32 v{P}, -1", f"v_mov_b32 v{P+1}, -1", f"v_mov_b32 v{P+2}, -1", f"v_mov_b32 v{P+3}, -1")
    A.e(f"s_cmp_eq_u32 s{sS}, 0", f"s_cbranch_scc1 {first}")
    A.e(f"buffer_store_dwordx4 {vr(P,4)}, v{vLIN}, {WS}, s{sRSZ} offen{sc}", f"buffer_store_dwordx4 {vr(P,4)}, v{vLIN}, {WS}, s{sRSZ} offen offset:1024{sc}",
        f"buffer_store_dword v{P}, v{vAGS}, {WS}, s{sAGZ} offen{sc}", f"buffer_store_dword v{P}, v{vAGS}, {WS}, s{sAGZ} offen offset:16{sc}")
    A.put(first)
    for k in range(8): A.e(f"v_mov_b32 v{vVXc+k}, v{vVXn+k}")
    A.e(f"s_add_u32 s{sKXS}, s{sKXS}, 0x40000", f"s_add_u32 s{sVXS}, s{sVXS}, 0x40000", f"s_xor_b32 s{sM0KX}, s{sM0KX}, 0x2000",
        f"s_mov_b32 m0, s{sM0KX}", "s_nop 0",
        f"buffer_load_dwordx4 v{vLIN}, {WS}, s{sKXS} offen lds", f"buffer_load_dwordx4 v{vLIN}, {WS}, s{sKXS} offen offset:1024 lds",
        f"buffer_load_dwordx4 {vr(vVXn,4)}, v{vLIN}, {WS}, s{sVXS} offen", f"buffer_load_dwordx4 {vr(vVXn+4,4)}, v{vLIN}, {WS}, s{sVXS} offen offset:1024")
    for k in range(24): A.e(f"v_mov_b32 v{vAQ+k}, 0")
    A.e("s_waitcnt lgkmcnt(0)", "s_nop 1")
    mark(A, 1)
    for ks in range(8):
        a = vr(vM + 4 * ks, 4)
        for t in range(2): A.e(f"v_smfmac_f32_16x16x64_bf16 {vr(vAQ+4*t,4)}, {a}, {wq(t,ks)}, v{vIDX}")
        for t in range(2): A.e(f"v_smfmac_f32_16x16x64_bf16 {vr(vAK+4*t,4)}, {a}, {wk(t,ks)}, v{vIDX}")
        for t in range(2): A.e(f"v_smfmac_f32_16x16x64_bf16 {vr(vAV+4*t,4)}, {a}, {wv(t,ks)}, v{vIDX}")
    nop(A, 9)
    mark(A, 2)
    A.c("half sums, pack, exchange q and k through LDS")
    for base, dst in ((vAQ, P), (vAK, P + 4), (vAV, P + 8)):
        for t in range(2):
            r = base + 4 * t
            A.e(f"v_add_f32 v{r}, v{r}, v{r+2}", f"v_add_f32 v{r+1}, v{r+1}, v{r+3}")
    A.e(f"v_cvt_pk_bf16_f32 v{P}, v{vAQ}, v{vAQ+1}", f"v_cvt_pk_bf16_f32 v{P+2}, v{vAQ+4}, v{vAQ+5}",
        f"v_cvt_pk_bf16_f32 v{P+4}, v{vAK}, v{vAK+1}", f"v_cvt_pk_bf16_f32 v{P+5}, v{vAK+4}, v{vAK+5}",
        f"v_cvt_pk_bf16_f32 v{vVM0}, v{vAV}, v{vAV+1}", f"v_cvt_pk_bf16_f32 v{vVM1}, v{vAV+4}, v{vAV+5}",
        f"v_mov_b32 v{P+1}, v{P}", f"v_mov_b32 v{P+3}, v{P+2}")
    A.e(f"ds_write_b64 v{vQW}, {vr(P,2)}", f"ds_write_b64 v{vQW}, {vr(P+2,2)} offset:512",
        f"ds_write_b32 v{vQW}, v{P+4} offset:4096", f"ds_write_b32 v{vQW}, v{P+5} offset:4608")
    A.e(f"buffer_store_dword v{vVM0}, v{vVMS}, {WS}, s{sVM} offen sc1", f"buffer_store_dword v{vVM1}, v{vVMS}, {WS}, s{sVM} offen offset:256 sc1")
    A.e("s_waitcnt lgkmcnt(0)", "s_barrier")
    Qo, KMo = vM, vM + 16
    KXo = [68, 72, 76, 80, 84, 88, P + 12, P + 16]
    for ks in range(4):
        A.e(f"ds_read_b64_tr_b16 {vr(Qo+4*ks,2)}, v{vQR0} offset:{ks*1024}", f"ds_read_b64_tr_b16 {vr(Qo+4*ks+2,2)}, v{vQR1} offset:{ks*1024}",
            f"ds_read_b64_tr_b16 {vr(KMo+4*ks,2)}, v{vQR0} offset:{4096+ks*1024}", f"ds_read_b64_tr_b16 {vr(KMo+4*ks+2,2)}, v{vQR1} offset:{4096+ks*1024}")
    for ks in range(4):
        for T in range(2):
            A.e(f"ds_read_b128 {vr(KXo[T*4+ks],4)}, v{vKX+ks} offset:{T*4096}")
    for ks in range(4): A.e(f"v_xor_b32 v{vKX+ks}, 0x2000, v{vKX+ks}")
    A.e("s_waitcnt lgkmcnt(0)")
    mark(A, 3)
    A.c("publish k_mem: wave w stores k-step w")
    lab = [A.label("km") for _ in range(5)]
    for wv_ in range(4):
        A.e(f"s_cmp_lg_u32 s{sW}, {wv_}", f"s_cbranch_scc1 {lab[wv_]}", f"buffer_store_dwordx4 {vr(KMo+4*wv_,4)}, v{vKMS}, {WS}, s{sKM} offen sc1", f"s_branch {lab[4]}")
        A.put(lab[wv_])
    A.put(lab[4])
    A.e(f"s_add_u32 s{sKM}, s{sKM}, 0x10000", f"s_add_u32 s{sVM}, s{sVM}, 0x10000")
    fin = A.label("fin")
    A.e(f"s_cmp_eq_u32 s{sS}, 63", f"s_cbranch_scc1 {fin}")
    SA = P
    for ks in range(4):
        c0 = "0" if ks == 0 else None
        for T in range(2):
            A.e(f"v_mfma_f32_16x16x32_bf16 {vr(SA+4*T,4)}, {vr(KXo[T*4+ks],4)}, {vr(Qo+4*ks,4)}, {c0 or vr(SA+4*T,4)}")
        A.e(f"v_mfma_f32_16x16x32_bf16 {vr(SA+8,4)}, {vr(KMo+4*ks,4)}, {vr(Qo+4*ks,4)}, {c0 or vr(SA+8,4)}")
    nop(A, 9)
    A.c("softmax over 8 + 2 keys per lane and the four lane groups")
    T0, T1 = vM, vM + 1
    A.e(f"v_max3_f32 v{T0}, v{SA}, v{SA+1}, v{SA+2}", f"v_max3_f32 v{T1}, v{SA+3}, v{SA+4}, v{SA+5}", f"v_max3_f32 v{T0}, v{T0}, v{SA+6}, v{SA+7}",
        f"v_max3_f32 v{T1}, v{T1}, v{SA+8}, v{SA+9}", f"v_max_f32 v{T0}, v{T0}, v{T1}")
    for sw in ("v_permlane16_swap_b32", "v_permlane32_swap_b32"):
        A.e(f"v_mov_b32 v{T1}, v{T0}", "s_nop 1", f"{sw} v{T0}, v{T1}", "s_nop 1", f"v_max_f32 v{T0}, v{T0}, v{T1}")
    A.e(f"v_mul_f32 v{T0}, s{sC}, v{T0}")
    for k in range(10): A.e(f"v_fma_f32 v{SA+k}, v{SA+k}, s{sC}, -v{T0}")
    for k in range(10): A.e(f"v_exp_f32 v{SA+k}, v{SA+k}")
    PX = vM + 4
    A.e("s_nop 0")
    for k in range(4): A.e(f"v_cvt_pk_bf16_f32 v{PX+k}, v{SA+2*k}, v{SA+2*k+1}")
    A.e(f"v_cvt_pk_bf16_f32 v{vPM}, v{SA+8}, v{SA+9}", "s_nop 1")
    mark(A, 4)
    OA, LA = vM + 8, vM + 16
    for t in range(2):
        A.e(f"v_mfma_f32_16x16x32_bf16 {vr(OA+4*t,4)}, {vr(vVXc+4*t,4)}, {vr(PX,4)}, 0")
    A.e(f"v_mfma_f32_16x16x32_bf16 {vr(LA,4)}, {vr(vSEL,4)}, {vr(PX,4)}, 0")
    A.e(f"v_mfma_f32_16x16x16_bf16 {vr(OA,4)}, {vr(vVM0,2)}, {vr(vPM,2)}, {vr(OA,4)}", f"v_mfma_f32_16x16x16_bf16 {vr(OA+4,4)}, {vr(vVM1,2)}, {vr(vPM,2)}, {vr(OA+4,4)}",
        f"v_mfma_f32_16x16x16_bf16 {vr(LA,4)}, {vr(vSEL,2)}, {vr(vPM,2)}, {vr(LA,4)}")
    nop(A, 9)
    A.e(f"v_add_f32 v{LA}, v{LA}, v{LA+1}", f"v_rcp_f32 v{LA}, v{LA}", f"v_cmp_eq_u32 vcc, 0x4444, v{vIDX}", "s_nop 1")
    for t in range(2):
        r = OA + 4 * t
        A.e(f"v_cndmask_b32 v{r}, v{r+2}, v{r}, vcc", f"v_cndmask_b32 v{r+1}, v{r+3}, v{r+1}, vcc",
            f"v_mul_f32 v{r}, v{r}, v{LA}", f"v_mul_f32 v{r+1}, v{r+1}, v{LA}", f"v_cvt_pk_bf16_f32 v{r}, v{r}, v{r+1}", f"ds_write_b32 v{vOW}, v{r} offset:{t*32}")
    A.e("s_waitcnt lgkmcnt(0)", "s_barrier")
    mark(A, 5)
    OO = vM
    A.e(f"ds_read_b128 {vr(OO,4)}, v{vOR0}", f"ds_read_b128 {vr(OO+4,4)}, v{vOR1}")
    WB = [vM + 8, vM + 16, vM + 24, P, P + 8]
    ACC = 68
    for half in range(2):
        for k in range(16): A.e(f"v_mov_b32 v{ACC+k}, 0")
        for Tl in range(4):
            T = half * 4 + Tl
            for ksp in range(2):
                b = WB[(Tl * 2 + ksp) % 2]
                wo = vWO0 if ksp == 0 else vWO1
                A.e(f"ds_read_b128 {vr(b,4)}, v{wo} offset:{T*2048}", f"ds_read_b128 {vr(b+4,4)}, v{wo} offset:{T*2048+1024}", "s_waitcnt lgkmcnt(0)",
                    f"v_smfmac_f32_16x16x64_bf16 {vr(ACC+4*Tl,4)}, {vr(OO+4*ksp,4)}, {vr(b,8)}, v{vIDX}")
        nop(A, 9)
        for Tl in range(4):
            T = half * 4 + Tl; r = ACC + 4 * Tl
            A.e(f"v_add_f32 v{r}, v{r}, v{r+2}", f"v_add_f32 v{r+1}, v{r+1}, v{r+3}", f"v_cvt_pk_bf16_f32 v{r}, v{r}, v{r+1}", f"v_min_u32 v{r}, -2, v{r}",
                f"s_add_u32 s{sT0}, s{sRSW}, {T*8192}", f"buffer_store_dword v{r}, v{vRSS}, {WS}, s{sT0} offen{sc}")
        A.e("s_nop 1")
    mark(A, 6)
    A.c("---- RS poll and reduce")
    A.put(pr)
    D = vM
    for st in range(2):
        for q in range(4):
            A.e(f"buffer_load_dword v{D+4*st+q}, v{vRSL}, {WS}, s{sRSR if st == 0 else sRSR1} offen offset:{q*256} sc1")
    A.e("s_waitcnt vmcnt(0)",
        f"v_max3_u32 v{D+8}, v{D}, v{D+1}, v{D+2}", f"v_max3_u32 v{D+9}, v{D+3}, v{D+4}, v{D+5}", f"v_max3_u32 v{D+8}, v{D+8}, v{D+6}, v{D+7}",
        f"v_max_u32 v{D+8}, v{D+8}, v{D+9}", f"v_cmp_eq_u32 vcc, -1, v{D+8}")
    retry(A, pr, end_label)
    mark(A, 7)
    R = D + 12
    A.e(f"v_mfma_f32_16x16x32_bf16 {vr(R,4)}, {vr(D,4)}, {vr(vSEL,4)}, 0", f"v_mfma_f32_16x16x32_bf16 {vr(R,4)}, {vr(D+4,4)}, {vr(vSEL,4)}, {vr(R,4)}")
    nop(A, 9)
    A.e(f"v_cvt_pk_bf16_f32 v{R}, v{R}, v{R+1}", f"v_cvt_pk_bf16_f32 v{R+2}, v{R+2}, v{R+3}", f"v_min_u32 v{R}, -2, v{R}", f"v_min_u32 v{R+2}, -2, v{R+2}",
        f"buffer_store_dword v{R}, v{vAGS}, {WS}, s{sAGW} offen{sc}", f"buffer_store_dword v{R+2}, v{vAGS}, {WS}, s{sAGW} offen offset:16{sc}")
    mark(A, 8)
    prof_step(A)
    A.c("advance rings")
    A.e(f"s_mov_b32 s{sT0}, s{sAGZ}", f"s_mov_b32 s{sAGZ}, s{sAGR}", f"s_mov_b32 s{sAGR}, s{sAGW}", f"s_mov_b32 s{sAGW}, s{sT0}",
        f"s_mov_b32 s{sRSZ}, s{sRSR}", f"s_xor_b32 s{sRSW}, s{sRSW}, 0x40000", f"s_xor_b32 s{sRSR}, s{sRSR}, 0x40000", f"s_xor_b32 s{sRSR1}, s{sRSR1}, 0x40000",
        f"s_add_u32 s{sS}, s{sS}, 1", f"s_branch {loop}")
    A.put(fin)
    prof_out(A)
    A.e(f"s_branch {end_label}")

def gen_chain_kernel(A, name):
    kernel_header(A, name)
    end = A.label("end")
    A.e("s_cmp_ge_u32 s2, 256", f"s_cbranch_scc1 {end}")
    A.e("s_load_dwordx4 s[44:47], s[0:1], 8", "s_load_dwordx4 s[48:51], s[0:1], 24", "s_load_dwordx2 s[52:53], s[0:1], 40", "s_load_dwordx4 s[4:7], s[0:1], 88")
    A.e("v_lshrrev_b32 v40, 6, v0", "s_nop 0", f"v_readfirstlane_b32 s{sW}, v40", "s_waitcnt lgkmcnt(0)")
    srd(A, SWS, sWSP, WS_BYTES); srd(A, SM0, 44, 8192); srd(A, SWQ, 46, 4 << 20); srd(A, SWK, 48, 4 << 20); srd(A, SWV, 50, 4 << 20); srd(A, SWO, 52, 4 << 20)
    A.e(f"s_mov_b32 s{sPOLL}, 0")
    election(A, end)
    lane_consts(A)
    slow = A.label("slowpath")
    A.e(f"s_cmp_eq_u32 s{sMODE}, 2", f"s_cbranch_scc1 {slow}")
    for sc, lab in (("", None), (" sc1", slow)):
        if lab: A.put(lab)
        init_buffers(A, sc)
        load_weights(A)
        step_loop(A, sc, end)
    A.put(end)
    A.e("s_endpgm")
```

```python
from asmlib import *
from layout import *
from sched import *
import chain as C1
from chain import (sDBG, sWSP, SWS, SWQ, SWK, SWV, SWO, SM0, sW, sH, sMODE, sS, sT0, sT1, sT2, sT3, sC, sPOLL, CTL_BAR,
                   election, retry, nop, mark, prof_init, prof_out, prof_step)

STOP_AFTER_A = False
DROP = set()
sAGR, sAGW, sAGZ, sRSR, sRSR1, sRSZ = 36, 37, 38, 40, 41, 42
sKXS, sVXS, sKV, sM0KX = 43, 54, 55, 57
sKVp = 39
sRT = 12
vIDX, vLIN, vRSL, vRSS = 0, 1, 2, 3
vSEL, vSELQ = 4, 8
vAGW0, vAGW1, vAGRe, vAGRo = 12, 13, 14, 15
vQW, vQR0, vQR1, vOW = 16, 17, 18, 19
vKX = 20
vOR, vWO0, vWO1, vAGS = 24, 25, 26, 27
vVM0, vKP0, vVM1, vKP1, vPM = 28, 29, 30, 31, 32
vVXc, vVXn = 36, 44
vM = 52
vAQ, vAK, vAV = 84, 92, 100
vP = 108
WV0 = 128
OSTR = 288
WS = f"s[{SWS}:{SWS+3}]"

def wq(t, ks): return ar((t * 8 + ks) * 8, 8)
def wk(t, ks): return ar(128 + (t * 8 + ks) * 8, 8)
def wv(t, ks): return vr(WV0 + (t * 8 + ks) * 8, 8)

def lane_consts(A):
    A.c("---- per-lane constants; v40=l v41=i v42=g v43=half v44=tok v45=i&1")
    A.e("v_and_b32 v40, 63, v0", "v_and_b32 v41, 15, v0", "v_lshrrev_b32 v42, 4, v40")
    A.e("v_lshrrev_b32 v43, 1, v41", "v_and_b32 v43, 1, v43")
    A.e("v_lshrrev_b32 v44, 2, v41", "v_lshlrev_b32 v44, 1, v44", "v_and_b32 v45, 1, v41", "v_add_u32 v44, v44, v45")
    A.e(f"v_mov_b32 v{vIDX}, 0x4444", "v_mov_b32 v46, 0xeeee", "v_cmp_eq_u32 vcc, 1, v43", "s_nop 1", f"v_cndmask_b32 v{vIDX}, v{vIDX}, v46, vcc")
    A.e("v_mov_b32 v46, 0x3f80", "v_mov_b32 v47, 0x3f800000", "v_cmp_eq_u32 vcc, 1, v45", "s_nop 1", f"v_cndmask_b32 v{vSEL}, v46, v47, vcc")
    for k in range(1, 4): A.e(f"v_mov_b32 v{vSEL+k}, v{vSEL}")
    A.c("SELQ: row i picks register i&3 and token parity (i>>2)&1")
    A.e("v_lshrrev_b32 v48, 2, v41", "v_and_b32 v48, 1, v48", "v_cmp_eq_u32 vcc, 1, v48", "s_nop 1", "v_cndmask_b32 v48, v46, v47, vcc", "v_and_b32 v49, 3, v41")
    for q in range(4):
        A.e(f"v_cmp_eq_u32 vcc, {q}, v49", "s_nop 1", f"v_cndmask_b32 v{vSELQ+q}, 0, v48, vcc")
    A.e(f"s_lshl_b32 s{sT0}, s{sW}, 11", f"v_lshlrev_b32 v{vLIN}, 4, v40", f"v_add_u32 v{vLIN}, s{sT0}, v{vLIN}")
    A.c("RSL = (4g + (i>>2))*256 + (4w + (i&3))*16")
    if RSLAY == 0:
        A.e("v_lshrrev_b32 v46, 2, v41", "v_lshl_add_u32 v46, v42, 2, v46", "v_lshlrev_b32 v46, 8, v46", "v_lshl_add_u32 v46, v49, 4, v46",
            f"s_lshl_b32 s{sT0}, s{sW}, 6", f"v_add_u32 v{vRSL}, s{sT0}, v46")
    else:
        A.e("v_lshrrev_b32 v46, 2, v41", "v_lshl_add_u32 v46, v42, 2, v46", "v_lshlrev_b32 v46, 6, v46", "v_lshl_add_u32 v46, v49, 4, v46",
            f"s_lshl_b32 s{sT0}, s{sW}, 11", f"v_add_u32 v{vRSL}, s{sT0}, v46")
    A.c("RSS = w*65536 + g*8192 + h*256 + i*16")
    if RSLAY == 0:
        A.e(f"s_mul_i32 s{sT0}, s{sW}, {8*CS}", f"s_lshl_b32 s{sT1}, s{sH}, 8", f"s_add_u32 s{sT0}, s{sT0}, s{sT1}",
            f"v_mul_u32_u24 v46, {CS}, v42", "v_lshl_add_u32 v46, v41, 4, v46", f"v_add_u32 v{vRSS}, s{sT0}, v46")
    else:
        A.e(f"s_mul_i32 s{sT0}, s{sW}, {8*CS}", f"s_lshl_b32 s{sT1}, s{sH}, 6", f"s_add_u32 s{sT0}, s{sT0}, s{sT1}",
            f"v_mul_u32_u24 v46, {CS}, v42", "v_lshrrev_b32 v47, 2, v41", "v_lshl_add_u32 v46, v47, 11, v46", "v_lshl_add_u32 v46, v49, 4, v46", f"v_add_u32 v{vRSS}, s{sT0}, v46")
    A.c("AGS = (2(h&3) + g)*1024 + (h>>2)*128 + w*32 + (i&3)*8 for i<4 and g<2, else out of range")
    A.e(f"s_and_b32 s{sT0}, s{sH}, 3", f"s_lshl_b32 s{sT0}, s{sT0}, 11", f"s_lshr_b32 s{sT1}, s{sH}, 2", f"s_lshl_b32 s{sT1}, s{sT1}, 7", f"s_add_u32 s{sT0}, s{sT0}, s{sT1}",
        f"s_lshl_b32 s{sT1}, s{sW}, 5", f"s_add_u32 s{sT0}, s{sT0}, s{sT1}",
        "v_and_b32 v46, 1, v42", "v_lshlrev_b32 v46, 10, v46", "v_lshl_add_u32 v46, v49, 3, v46", f"v_add_u32 v50, s{sT0}, v46",
        "v_lshrrev_b32 v47, 1, v42", "v_lshrrev_b32 v48, 2, v41", "v_or_b32 v47, v47, v48", "v_mov_b32 v46, 0x70000000",
        "v_cmp_eq_u32 vcc, 0, v47", "s_nop 1", f"v_cndmask_b32 v{vAGS}, v46, v50, vcc")
    A.e(f"s_lshl_b32 s{sT0}, s{sW}, 1", f"s_and_b32 s{sT1}, s{sT0}, 3", f"s_lshl_b32 s{sT1}, s{sT1}, 2",
        f"v_xor_b32 v46, s{sT1}, v40", f"v_lshlrev_b32 v{vAGW0}, 4, v46",
        f"s_lshl_b32 s{sT0}, s{sT0}, 10", f"s_add_u32 s{sT0}, s{sT0}, {L_MB}", f"v_add_u32 v{vAGW0}, s{sT0}, v{vAGW0}",
        f"v_xor_b32 v{vAGW1}, 64, v{vAGW0}", f"v_add_u32 v{vAGW1}, 1024, v{vAGW1}")
    A.e("v_lshlrev_b32 v46, 1, v42", "v_add_u32 v46, v46, v43",
        "v_and_b32 v47, 1, v44", "v_lshlrev_b32 v47, 2, v47", "v_xor_b32 v46, v46, v47", "v_lshlrev_b32 v46, 4, v46",
        "v_lshrrev_b32 v47, 1, v44", "v_and_b32 v47, 1, v47", "v_lshlrev_b32 v47, 7, v47",
        "v_lshlrev_b32 v48, 10, v44", "v_add_u32 v48, v48, v46", f"v_add_u32 v48, {L_MB}, v48",
        f"v_add_u32 v{vAGRe}, v48, v47", f"v_sub_u32 v{vAGRo}, v48, v47")
    A.e(f"v_mul_u32_u24 v46, {OSTR}, v44", f"v_add_u32 v46, {L_MB}, v46", f"v_lshl_add_u32 v{vOR}, v42, 4, v46",
        f"s_lshl_b32 s{sT0}, s{sW}, 6", f"v_lshl_add_u32 v46, v42, 3, v46", "v_lshl_add_u32 v46, v43, 2, v46", f"v_add_u32 v{vOW}, s{sT0}, v46")
    A.e(f"s_lshl_b32 s{sT0}, s{sW}, 10", "v_lshlrev_b32 v46, 5, v41", "v_lshrrev_b32 v47, 3, v41", "v_lshlrev_b32 v47, 7, v47", "v_xor_b32 v46, v46, v47",
        "v_lshl_add_u32 v46, v42, 3, v46", f"v_add_u32 v46, s{sT0}, v46", f"v_add_u32 v{vQW}, {L_Q}, v46")
    A.e("v_lshlrev_b32 v46, 8, v42", "v_lshrrev_b32 v47, 2, v41", "v_lshl_add_u32 v46, v47, 5, v46", "v_and_b32 v47, 3, v41", "v_lshl_add_u32 v46, v47, 3, v46",
        "v_and_b32 v47, 1, v42", "v_lshl_add_u32 v46, v47, 7, v46", f"v_add_u32 v{vQR0}, {L_Q}, v46", f"v_xor_b32 v{vQR1}, 128, v{vQR0}")
    for ks in range(4):
        A.e(f"v_or_b32 v46, {4*ks}, v42", "v_xor_b32 v46, v46, v41", "v_lshlrev_b32 v46, 4, v46", "v_lshl_add_u32 v46, v41, 8, v46", f"v_add_u32 v{vKX+ks}, {L_KX}, v46")
    A.e(f"s_lshl_b32 s{sT0}, s{sW}, 14", f"v_lshlrev_b32 v{vWO0}, 4, v40", f"v_add_u32 v{vWO0}, s{sT0}, v{vWO0}", f"v_add_u32 v{vWO1}, 0x10000, v{vWO0}")
    for r in range(vVM0, vPM + 4): A.e(f"v_mov_b32 v{r}, 0")
    A.e(f"s_mov_b32 s{sC}, 0x3e0293ee")

def init_buffers(A, sc):
    A.c("---- sentinel init of this head's receive areas, m_0 from mem0 (in column-position order)")
    A.e("v_mov_b32 v52, -1", "v_mov_b32 v53, -1", "v_mov_b32 v54, -1", "v_mov_b32 v55, -1")
    A.e(f"s_mul_i32 s{sT0}, s{sH}, {CS}", f"s_add_u32 s{sT0}, s{sT0}, {RS:#x}", f"s_add_u32 s{sT1}, s{sT0}, {SLOT:#x}")
    for so in (sT0, sT1):
        A.e(f"buffer_store_dwordx4 v[52:55], v{vLIN}, {WS}, s{so} offen{sc}", f"buffer_store_dwordx4 v[52:55], v{vLIN}, {WS}, s{so} offen offset:1024{sc}")
    for r in (1, 2):
        A.e(f"s_mov_b32 s{sT0}, {AG + r*8192:#x}", f"buffer_store_dwordx2 v[52:53], v{vAGS}, {WS}, s{sT0} offen{sc}")
    A.e(f"s_and_b32 s{sT0}, s{sH}, 3", f"s_lshl_b32 s{sT0}, s{sT0}, 11", f"s_lshr_b32 s{sT1}, s{sH}, 2", f"s_lshl_b32 s{sT1}, s{sT1}, 7", f"s_add_u32 s{sT0}, s{sT0}, s{sT1}",
        f"s_lshl_b32 s{sT1}, s{sW}, 3", f"s_add_u32 s{sT0}, s{sT0}, s{sT1}",
        "v_and_b32 v46, 1, v42", "v_lshlrev_b32 v46, 10, v46", "v_and_b32 v47, 3, v41", "v_lshl_add_u32 v46, v47, 1, v46", f"v_add_u32 v46, s{sT0}, v46")
    for q in range(4): A.e(f"buffer_load_ushort v{56+q}, v46, s[{SM0}:{SM0+3}], 0 offen offset:{32*q}")
    A.e("s_waitcnt vmcnt(0)", "v_lshl_or_b32 v56, v57, 16, v56", "v_lshl_or_b32 v57, v59, 16, v58", "v_min_u32 v56, -2, v56", "v_min_u32 v57, -2, v57",
        f"s_mov_b32 s{sT0}, {AG:#x}", f"buffer_store_dwordx2 v[56:57], v{vAGS}, {WS}, s{sT0} offen{sc}")
    A.e("s_waitcnt vmcnt(0)", "s_barrier")
    skip = A.label("arrive_skip")
    A.e(f"s_cmp_lg_u32 s{sW}, 0", f"s_cbranch_scc1 {skip}", "s_mov_b64 exec, 1", "v_mov_b32 v46, 0", "v_mov_b32 v47, 1",
        f"global_atomic_add v46, v47, s[{sDBG}:{sDBG+1}] offset:{CTL_BAR}", "s_waitcnt vmcnt(0)", "s_mov_b64 exec, -1")
    A.put(skip)

def load_weights(A):
    A.c("---- weights: 16 chunks of 32 KiB through a 5-slot LDS ring")
    A.e("v_lshlrev_b32 v46, 13, v42", "v_lshl_add_u32 v46, v41, 4, v46")
    A.e("v_lshrrev_b32 v47, 5, v40", "v_lshlrev_b32 v47, 10, v47", "v_and_b32 v48, 31, v40", "v_lshl_add_u32 v47, v48, 4, v47")
    A.e("v_lshrrev_b32 v50, 2, v41", "v_lshlrev_b32 v50, 4, v50", "v_lshrrev_b32 v51, 1, v42", "v_lshl_add_u32 v50, v51, 2, v50", "v_and_b32 v51, 1, v42", "v_add_u32 v50, v50, v51",
        "v_and_b32 v51, 3, v41", "v_lshlrev_b32 v51, 3, v51",
        "v_lshl_add_u32 v48, v50, 8, v51", f"s_lshl_b32 s{sT0}, s{sW}, 6", f"v_add_u32 v48, s{sT0}, v48")
    A.e("v_lshrrev_b32 v49, 1, v42", "v_lshlrev_b32 v49, 3, v49", "v_and_b32 v50, 1, v42", "v_lshl_add_u32 v49, v50, 2, v49", "v_lshrrev_b32 v50, 2, v41", "v_add_u32 v49, v49, v50",
        "v_lshl_add_u32 v49, v49, 9, v51", f"s_lshl_b32 s{sT0}, s{sW}, 7", f"v_add_u32 v49, s{sT0}, v49",
        f"s_lshl_b32 s{sT0}, s{sW}, 13", "v_lshlrev_b32 v50, 4, v40", f"v_add_u32 v50, s{sT0}, v50")
    slot = lambda c: ((c + 3) % 5) * 32768
    def issue(c):
        if c < 12:
            s_ = (SWQ, SWK, SWV)[c // 4]; cc = c % 4
            A.e(f"s_lshl_b32 s{sT0}, s{sW}, 18", f"s_lshl_b32 s{sT1}, s{sH}, 8", f"s_add_u32 s{sT0}, s{sT0}, s{sT1}", f"s_add_u32 s{sT0}, s{sT0}, {128*cc*8192:#x}",
                f"s_lshl_b32 s{sT1}, s{sW}, 13", f"s_add_u32 s{sT1}, s{sT1}, {slot(c)}")
            for n in range(8):
                A.e(f"s_mov_b32 m0, s{sT1}", "s_nop 0", f"buffer_load_dwordx4 v46, s[{s_}:{s_+3}], s{sT0} offen lds")
                if n < 7: A.e(f"s_add_u32 s{sT0}, s{sT0}, 0x8000", f"s_add_u32 s{sT1}, s{sT1}, 1024")
        else:
            cc = c - 12; ksp = cc >> 1; cp = cc & 1
            A.e(f"s_lshl_b32 s{sT0}, s{sW}, 14", f"s_lshl_b32 s{sT1}, s{sH}, 17", f"s_add_u32 s{sT0}, s{sT0}, s{sT1}", f"s_add_u32 s{sT0}, s{sT0}, {64*ksp*1024 + cp*512:#x}",
                f"s_lshl_b32 s{sT1}, s{sW}, 13", f"s_add_u32 s{sT1}, s{sT1}, {slot(c)}")
            for n in range(8):
                A.e(f"s_mov_b32 m0, s{sT1}", "s_nop 0", f"buffer_load_dwordx4 v47, s[{SWO}:{SWO+3}], s{sT0} offen lds")
                if n < 7: A.e(f"s_add_u32 s{sT0}, s{sT0}, 0x800", f"s_add_u32 s{sT1}, s{sT1}, 1024")
    for c in range(4): issue(c)
    for c in range(16):
        A.e(f"s_waitcnt vmcnt({8 * (min(c + 3, 15) - c)})", "s_barrier")
        if c + 4 < 16: issue(c + 4)
        if c < 12:
            cc = c % 4
            A.e(f"v_add_u32 v51, {slot(c)}, v48")
            moves = []
            tmp = 56
            for kk in range(2):
                ks = 2 * cc + kk
                for t in range(2):
                    for u in range(2):
                        for hf in range(2):
                            off = (64 * kk + 8 * u + 2 * hf) * 256 + t * 32
                            A.e(f"ds_read_b64_tr_b16 {vr(tmp, 2)}, v51 offset:{off}")
                            base = (t * 8 + ks) * 8 + 4 * u + hf
                            moves += [(base, tmp), (base + 2, tmp + 1)]
                            tmp += 2
            A.e("s_waitcnt lgkmcnt(0)")
            for base, src in moves:
                if c < 4: A.e(f"v_accvgpr_write_b32 a{base}, v{src}")
                elif c < 8: A.e(f"v_accvgpr_write_b32 a{128+base}, v{src}")
                else: A.e(f"v_mov_b32 v{WV0+base}, v{src}")
        else:
            A.e(f"v_add_u32 v51, {slot(c)}, v49")
            for fl in range(4):
                for u in range(2):
                    for tp in range(2):
                        off = (fl >> 1) * 64 + (fl & 1) * 16384 + u * 8192 + tp * 32
                        A.e(f"ds_read_b64_tr_b16 {vr(64 + fl * 8 + u * 4 + tp * 2, 2)}, v51 offset:{off}")
            A.e("s_waitcnt lgkmcnt(0)", "s_barrier", f"v_add_u32 v51, {slot(c)}, v50")
            for fl in range(4):
                for u in range(2):
                    b = 64 + fl * 8 + u * 4
                    A.e(f"v_mov_b32 v96, v{b+1}", f"v_mov_b32 v{b+1}, v{b+2}", f"v_mov_b32 v{b+2}, v96")
                    A.e(f"ds_write_b128 v51, {vr(b, 4)} offset:{fl * 2048 + u * 1024}")
            A.e("s_waitcnt lgkmcnt(0)")
    A.e("s_barrier")

def m_reads(p):
    for ks in range(8):
        ad = vAGRe if ks % 2 == 0 else vAGRo
        p.append(DSR(f"ds_read_b128 {vr(vM+4*ks,4)}, v{ad} offset:{ks*128}", [vr(vM+4*ks,4)], [f"v{ad}"]))

def smf(acc, ks, b):
    return SMF(f"v_smfmac_f32_16x16x64_bf16 {vr(acc,4)}, {vr(vM+4*ks,4)}, {b}, v{vIDX}", [vr(acc,4)], [vr(acc,4), vr(vM+4*ks,4), f"v{vIDX}"])

def publish(p, so, tag=None):
    p.append(VMS(f"buffer_store_dwordx4 {vr(vVM0,4)}, v{vLIN}, {WS}, s{so} offen sc1", [vr(vVM0,4), f"v{vLIN}", f"s{so}"], tag=tag))

def side_traffic(p, sc):
    P = vP
    if "pre" not in DROP:
        p.append(DMA(f"buffer_load_dwordx4 v{vLIN}, {WS}, s{sKXS} offen lds", [f"v{vLIN}", f"s{sKXS}", "m0"], tag="afterbar"))
        p.append(DMA(f"buffer_load_dwordx4 v{vLIN}, {WS}, s{sKXS} offen offset:1024 lds", [f"v{vLIN}", f"s{sKXS}", "m0"], tag="afterbar"))
        p.append(VML(f"buffer_load_dwordx4 {vr(vVXn,4)}, v{vLIN}, {WS}, s{sVXS} offen", [vr(vVXn,4)], [f"v{vLIN}", f"s{sVXS}"], tag="afterbar"))
        p.append(VML(f"buffer_load_dwordx4 {vr(vVXn+4,4)}, v{vLIN}, {WS}, s{sVXS} offen offset:1024", [vr(vVXn+4,4)], [f"v{vLIN}", f"s{sVXS}"], tag="afterbar"))
    if "pub" not in DROP: publish(p, sKVp, "afterbar")

def post_halves(p, acc):
    p.append(V(f"v_add_f32 v{acc}, v{acc}, v{acc+2}", [f"v{acc}"], [f"v{acc}", f"v{acc+2}"]))
    p.append(V(f"v_add_f32 v{acc+1}, v{acc+1}, v{acc+3}", [f"v{acc+1}"], [f"v{acc+1}", f"v{acc+3}"]))

def cvt(p, d, a, b, prio=0):
    p.append(V(f"v_cvt_pk_bf16_f32 v{d}, v{a}, v{b}", [f"v{d}"], [f"v{a}", f"v{b}"], prio))

def MK(p, k):
    if C1.PROF and (C1.MARKS is None or k in C1.MARKS):
        i = I(f"s_memtime s[{C1.sTM+2*k}:{C1.sTM+2*k+1}]", "mfma", (), ())
        i.tag = "mark"
        p.append(i)

def region_a(sc):
    P = vP
    p = [BAR()]
    m_reads(p)
    side_traffic(p, sc)
    for ks in range(8):
        for t in range(2): p.append(smf(vAQ + 4 * t, ks, wq(t, ks)))
    MK(p, 1)
    if NSET > 1:
        p.append(I("WAITVM", "mfma", [vr(P, 20)], [], tag="mark"))
    for t in range(2):
        for ks in range(8): p.append(smf(vAK + 4 * t, ks, wk(t, ks)))
    MK(p, 2)
    for ks in range(8):
        for t in range(2): p.append(smf(vAV + 4 * t, ks, wv(t, ks)))
    for t in range(2):
        post_halves(p, vAQ + 4 * t); cvt(p, P + 14 + t, vAQ + 4 * t, vAQ + 4 * t + 1)
        p.append(DSW(f"ds_write2_b32 v{vQW}, v{P+14+t}, v{P+14+t} offset0:{t*128} offset1:{t*128+1}", [f"v{vQW}", f"v{P+14+t}"]))
    for t, kp in ((0, vKP0), (1, vKP1)):
        post_halves(p, vAK + 4 * t); cvt(p, kp, vAK + 4 * t, vAK + 4 * t + 1)
        p.append(DSW(f"ds_write_b32 v{vQW}, v{kp} offset:{4096+t*512}", [f"v{vQW}", f"v{kp}"]))
    G = [dict(KX0=P, KX1=P + 4, Q=P + 8, KM=P + 12),
         dict(Q=vAK, KM=vAK + 4, KX0=vM, KX1=vM + 4),
         dict(Q=vM + 8, KM=vM + 12, KX0=vM + 16, KX1=vM + 20),
         dict(Q=vM + 24, KM=vM + 28, KX0=P, KX1=P + 4)]
    def kx(ks):
        for T in range(2):
            d = G[ks][f"KX{T}"]
            p.append(DSR(f"ds_read_b128 {vr(d,4)}, v{vKX+ks} offset:{T*4096}", [vr(d,4)], [f"v{vKX+ks}"]))
    kx(0)
    p.append(BAR())
    def qk(ks):
        for name, o in (("Q", 0), ("KM", 4096)):
            d = G[ks][name]
            p.append(DSR(f"ds_read_b64_tr_b16 {vr(d,2)}, v{vQR0} offset:{o+ks*1024}", [vr(d,2)], [f"v{vQR0}"]))
            p.append(DSR(f"ds_read_b64_tr_b16 {vr(d+2,2)}, v{vQR1} offset:{o+ks*1024}", [vr(d+2,2)], [f"v{vQR1}"]))
    qk(0); qk(1); kx(1); qk(2); kx(2); qk(3)
    for t, vm in ((0, vVM0), (1, vVM1)):
        post_halves(p, vAV + 4 * t); cvt(p, vm, vAV + 4 * t, vAV + 4 * t + 1)
    SA = [vAQ, vAQ + 4, P + 16]
    MK(p, 3)
    for ks in range(4):
        g = G[ks]
        for T, a in ((0, g["KX0"]), (1, g["KX1"]), (2, g["KM"])):
            c = "0" if ks == 0 else vr(SA[T], 4)
            p.append(MFMA(f"v_mfma_f32_16x16x32_bf16 {vr(SA[T],4)}, {vr(a,4)}, {vr(g['Q'],4)}, {c}", [vr(SA[T],4)],
                          [vr(a,4), vr(g['Q'],4)] + ([] if ks == 0 else [vr(SA[T],4)]), first=(ks == 0)))
        if ks == 0: kx(3)
    for ks in range(4):
        p.append(V(f"v_xor_b32 v{vKX+ks}, 0x2000, v{vKX+ks}", [f"v{vKX+ks}"], [f"v{vKX+ks}"], prio=-50))
    FS = [vM, vM + 8, vM + 16, vM + 24, vAK, P, P + 8]
    NF = len(FS)
    def frag(f):
        j, kap = f >> 2, f & 3
        wo = vWO0 if kap < 2 else vWO1
        d = FS[f % NF]
        o = j * 4096 + (kap & 1) * 2048
        p.append(DSR(f"ds_read_b128 {vr(d,4)}, v{wo} offset:{o}", [vr(d,4)], [f"v{wo}"]))
        p.append(DSR(f"ds_read_b128 {vr(d+4,4)}, v{wo} offset:{o+1024}", [vr(d+4,4)], [f"v{wo}"]))
    for f in range(NF): frag(f)
    s = [vAQ + k for k in range(8)] + [P + 16, P + 17]
    T0, T1 = vAV + 4, vAV + 5
    p.append(V(f"v_max3_f32 v{T0}, v{s[0]}, v{s[1]}, v{s[2]}", [f"v{T0}"], [f"v{x}" for x in s[0:3]]))
    p.append(V(f"v_max3_f32 v{T1}, v{s[3]}, v{s[4]}, v{s[5]}", [f"v{T1}"], [f"v{x}" for x in s[3:6]]))
    p.append(V(f"v_max3_f32 v{T0}, v{T0}, v{s[6]}, v{s[7]}", [f"v{T0}"], [f"v{T0}", f"v{s[6]}", f"v{s[7]}"]))
    p.append(V(f"v_max3_f32 v{T1}, v{T1}, v{s[8]}, v{s[9]}", [f"v{T1}"], [f"v{T1}", f"v{s[8]}", f"v{s[9]}"]))
    p.append(V(f"v_max_f32 v{T0}, v{T0}, v{T1}", [f"v{T0}"], [f"v{T0}", f"v{T1}"]))
    for sw in ("v_permlane16_swap_b32", "v_permlane32_swap_b32"):
        p.append(V(f"v_mov_b32 v{T1}, v{T0}", [f"v{T1}"], [f"v{T0}"]))
        p.append(PERM(f"{sw} v{T0}, v{T1}", [f"v{T0}", f"v{T1}"], [f"v{T0}", f"v{T1}"]))
        p.append(V(f"v_max_f32 v{T0}, v{T0}, v{T1}", [f"v{T0}"], [f"v{T0}", f"v{T1}"]))
    p.append(V(f"v_mul_f32 v{T0}, s{sC}, v{T0}", [f"v{T0}"], [f"v{T0}"]))
    for x in s:
        p.append(V(f"v_fma_f32 v{x}, v{x}, s{sC}, -v{T0}", [f"v{x}"], [f"v{x}", f"v{T0}"]))
        p.append(TRN(f"v_exp_f32 v{x}, v{x}", [f"v{x}"], [f"v{x}"]))
    PX = vAV
    for k in range(4): cvt(p, PX + k, s[2 * k], s[2 * k + 1])
    cvt(p, vPM, s[8], s[9])
    OA, LA = vAQ, P + 16
    MK(p, 4)
    p.append(MFMA(f"v_mfma_f32_16x16x32_bf16 {vr(LA,4)}, {vr(vSEL,4)}, {vr(PX,4)}, 0", [vr(LA,4)], [vr(vSEL,4), vr(PX,4)], first=True))
    for t in range(2):
        p.append(MFMA(f"v_mfma_f32_16x16x32_bf16 {vr(OA+4*t,4)}, {vr(vVXc+4*t,4)}, {vr(PX,4)}, 0", [vr(OA+4*t,4)], [vr(vVXc+4*t,4), vr(PX,4)], first=True))
    p.append(MFMA(f"v_mfma_f32_16x16x32_bf16 {vr(LA,4)}, {vr(vSEL,4)}, {vr(vPM,4)}, {vr(LA,4)}", [vr(LA,4)], [vr(vSEL,4), vr(vPM,4), vr(LA,4)]))
    for t, vm in ((0, vVM0), (1, vVM1)):
        p.append(MFMA(f"v_mfma_f32_16x16x32_bf16 {vr(OA+4*t,4)}, {vr(vm,4)}, {vr(vPM,4)}, {vr(OA+4*t,4)}", [vr(OA+4*t,4)], [vr(vm,4), vr(vPM,4), vr(OA+4*t,4)]))
    p.append(V(f"v_cmp_eq_u32 vcc, 0x4444, v{vIDX}", ["vcc"], [f"v{vIDX}"]))
    p.append(V(f"v_add_f32 v{LA}, v{LA}, v{LA+1}", [f"v{LA}"], [f"v{LA}", f"v{LA+1}"]))
    p.append(TRN(f"v_rcp_f32 v{LA}, v{LA}", [f"v{LA}"], [f"v{LA}"]))
    for t in range(2):
        r = OA + 4 * t
        p.append(V(f"v_cndmask_b32 v{r}, v{r+2}, v{r}, vcc", [f"v{r}"], [f"v{r}", f"v{r+2}", "vcc"]))
        p.append(V(f"v_cndmask_b32 v{r+1}, v{r+3}, v{r+1}, vcc", [f"v{r+1}"], [f"v{r+1}", f"v{r+3}", "vcc"]))
        p.append(V(f"v_mul_f32 v{r}, v{r}, v{LA}", [f"v{r}"], [f"v{r}", f"v{LA}"]))
        p.append(V(f"v_mul_f32 v{r+1}, v{r+1}, v{LA}", [f"v{r+1}"], [f"v{r+1}", f"v{LA}"]))
        cvt(p, r, r, r + 1)
        p.append(DSW(f"ds_write_b32 v{vOW}, v{r} offset:{t*32}", [f"v{vOW}", f"v{r}"]))
    ACC = [P + 16, vAQ + 4]
    OUT = [vAQ, vAV]
    p.append(BAR())
    OO = [vVXc, vVXc + 4, vAK, vAK + 4]
    return p, FS, NF, frag, ACC, OUT, OO

def region_a_full(sc):
    P = vP
    p, FS, NF, frag, ACC, OUT, OO = region_a(sc)
    OO = [vVXc, vVXc + 4, vAV, vAV + 4]
    OUT = [vAQ, vAQ]
    for kap in range(4):
        p.append(DSR(f"ds_read_b128 {vr(OO[kap],4)}, v{vOR} offset:{kap*64}", [vr(OO[kap],4)], [f"v{vOR}"]))
    nxt = NF
    MK(p, 5)
    for j in range(4):
        a = ACC[j % 2]
        p.append(V(f"v_mov_b64 {vr(a,2)}, 0", [vr(a,2)], []))
        p.append(V(f"v_mov_b64 {vr(a+2,2)}, 0", [vr(a+2,2)], []))
        for kap in range(4):
            f = 4 * j + kap; d = FS[f % NF]
            p.append(SMF(f"v_smfmac_f32_16x16x64_bf16 {vr(a,4)}, {vr(OO[kap],4)}, {vr(d,8)}, v{vIDX}", [vr(a,4)], [vr(a,4), vr(OO[kap],4), vr(d,8), f"v{vIDX}"]))
            if nxt < 16: frag(nxt); nxt += 1
        o = OUT[j >> 1]
        for tp in range(2):
            cvt(p, o + 2 * (j & 1) + tp, a + 2 * tp, a + 2 * tp + 1)
        if j & 1 and "rss" not in DROP:
            cg = j >> 1
            if RSTAG: p.append(V(f"v_and_or_b32 v{o}, v{o}, -2, s{sTAG}", [f"v{o}"], [f"v{o}"]))
            p.append(VMS(f"buffer_store_dwordx4 {vr(o,4)}, v{vRSS}, {WS}, s{sRT+cg} offen{sc}", [vr(o,4), f"v{vRSS}", f"s{sRT+cg}"]))
    return p

def emit_sched(A, prog, verbose=False):
    lines, est, _, _ = schedule(prog, verbose=verbose)
    A.c(f"scheduled region: {len(prog)} instructions, model estimate {est} cycles")
    nvm = 0
    for l in lines:
        if l.startswith("buffer_"): nvm += 1
        if l.startswith("WAITVM"): l = f"s_waitcnt vmcnt({nvm})"
        A.e(l)
    return est

def pre_poll(A, sc, first=False):
    P = vP
    if not first and "rst" not in DROP:
        A.c("hand the consumed exchange buffers back: RS slot (own lanes) and the m ring just read")
        for k in range(2 if RSTAG else 4): A.e(f"v_mov_b32 v{P+10+k}, -1")
        if not RSTAG: A.e(f"buffer_store_dwordx4 {vr(P+10,4)}, v{vRSL}, {WS}, s{sRSR} offen{sc}", f"buffer_store_dwordx4 {vr(P+10,4)}, v{vRSL}, {WS}, s{sRSR1} offen{sc}")
        A.e(f"buffer_store_dwordx2 {vr(P+10,2)}, v{vAGS}, {WS}, s{sAGR} offen{sc}")
    if not first:
        A.e(f"s_mov_b32 s{sT0}, s{sAGR}", f"s_mov_b32 s{sAGR}, s{sAGW}", f"s_mov_b32 s{sAGW}, s{sAGZ}", f"s_mov_b32 s{sAGZ}, s{sT0}",
            f"s_mov_b32 s{sKVp}, s{sKV}", f"s_add_u32 s{sKV}, s{sKV}, 0x40000")
        if RSTAG: A.e(f"s_xor_b32 s{sTAG}, s{sTAG}, 1")
        else: A.e(f"s_xor_b32 s{sRSR}, s{sRSR}, {SLOT:#x}", f"s_xor_b32 s{sRSR1}, s{sRSR1}, {SLOT:#x}",
            f"s_xor_b32 s{sRT}, s{sRT}, {SLOT:#x}", f"s_xor_b32 s{sRT+1}, s{sRT+1}, {SLOT:#x}")
    for k in range(0, 24, 2): A.e(f"v_mov_b64 {vr(vAQ+k,2)}, 0")
    for k in range(0, 8, 2): A.e(f"v_mov_b64 {vr(vVXc+k,2)}, {vr(vVXn+k,2)}")
    A.e(f"s_add_u32 s{sKXS}, s{sKXS}, 0x40000", f"s_add_u32 s{sVXS}, s{sVXS}, 0x40000", f"s_xor_b32 s{sM0KX}, s{sM0KX}, 0x2000", f"s_mov_b32 m0, s{sM0KX}")

CDELAY = 0
MASKED = True
RSTAG = True
sTAG = 56
RSLAY = 0
CS = 8192
SLOT = 0x40000
RS_DELAY = 0
AG_DELAY = 0
NSET = 1
PGAP = 24
def poll_loop(A, end_label, sets, issue, consume, done):
    n = len(sets)
    top = A.label("poll"); join = A.label("poll_join")
    oks = [A.label("poll_ok") for _ in sets]
    for k, b in enumerate(sets):
        issue(b)
        if k < n - 1 and PGAP: nop(A, PGAP)
    A.put(top)
    for k, b in enumerate(sets):
        A.e(f"s_waitcnt vmcnt({2 * (n - 1)})")
        consume(b)
        A.e(f"s_cbranch_vccz {oks[k]}")
        issue(b)
    A.e(f"s_add_u32 s{sPOLL}, s{sPOLL}, 1", f"s_cmp_lt_u32 s{sPOLL}, 0x40000", f"s_cbranch_scc1 {top}", f"s_branch {end_label}")
    for k, b in enumerate(sets):
        A.put(oks[k])
        done(b)
        if k < n - 1: A.e(f"s_branch {join}")
    A.put(join)

def sentinel_check(A, b, t):
    if "tag" in DROP:
        A.e(f"v_min3_u32 v{t}, v{b}, v{b+1}, v{b+2}", f"v_min3_u32 v{t+1}, v{b+3}, v{b+4}, v{b+5}", f"v_min3_u32 v{t}, v{t}, v{b+6}, v{b+7}",
            f"v_min_u32 v{t}, v{t}, v{t+1}", f"v_cmp_gt_u32 vcc, s{sS}, v{t}")
        return
    A.e(f"v_max3_u32 v{t}, v{b}, v{b+1}, v{b+2}", f"v_max3_u32 v{t+1}, v{b+3}, v{b+4}, v{b+5}", f"v_max3_u32 v{t}, v{t}, v{b+6}, v{b+7}",
        f"v_max_u32 v{t}, v{t}, v{t+1}", f"v_cmp_eq_u32 vcc, -1, v{t}")

def ag_poll2(A, end_label):
    P = vP
    sets = [P, vVXn - 0][:1] if False else [P, P + 10] + ([vAK - 0] if False else [])
    sets = sets[:NSET] if NSET <= 2 else sets
    def issue(b):
        A.e(f"buffer_load_dwordx4 {vr(b,4)}, v{vLIN}, {WS}, s{sAGR} offen sc1", f"buffer_load_dwordx4 {vr(b+4,4)}, v{vLIN}, {WS}, s{sAGR} offen offset:1024 sc1")
    def consume(b):
        A.e(f"ds_write_b128 v{vAGW0}, {vr(b,4)}", f"ds_write_b128 v{vAGW1}, {vr(b+4,4)}")
        sentinel_check(A, b, P + 8)
    poll_loop(A, end_label, sets, issue, consume, lambda b: None)
    A.e("s_waitcnt lgkmcnt(0)")

def ag_poll(A, end_label):
    if NSET > 1 and "poll" not in DROP: return ag_poll2(A, end_label)
    P = vP
    pa = A.label("poll_ag")
    def body():
        A.e(f"buffer_load_dwordx4 {vr(P,4)}, v{vLIN}, {WS}, s{sAGR} offen sc1", f"buffer_load_dwordx4 {vr(P+4,4)}, v{vLIN}, {WS}, s{sAGR} offen offset:1024 sc1",
            "s_waitcnt vmcnt(0)",
            f"ds_write_b128 v{vAGW0}, {vr(P,4)}", f"ds_write_b128 v{vAGW1}, {vr(P+4,4)}")
        sentinel_check(A, P, P + 8)
    if MASKED and "poll" not in DROP:
        ok = A.label("ag_ok")
        body()
        A.e(f"s_cbranch_vccz {ok}")
        A.put(pa)
        A.e("s_mov_b64 exec, vcc")
        body()
        retry(A, pa, end_label, 88)
        if C1.TOTAL: A.e("s_add_u32 s88, s88, 1")
        A.e("s_mov_b64 exec, -1")
        A.put(ok)
    else:
        A.put(pa)
        body()
        if "poll" not in DROP: retry(A, pa, end_label, 88)
    A.e("s_waitcnt lgkmcnt(0)")

def step_loop(A, sc, end_label, verbose=False):
    loop = A.label("step"); pr = A.label("poll_rs"); fin = A.label("fin")
    A.c("---- initial prefetch: K_x(0) -> buffer 0, V_x(0)")
    A.e(f"s_lshl_b32 s{sT0}, s{sH}, 13", f"s_add_u32 s{sKXS}, s{sT0}, {KB:#x}", f"s_add_u32 s{sVXS}, s{sT0}, {VT:#x}",
        f"s_add_u32 s{sKV}, s{sT0}, {KV:#x}", f"s_mov_b32 s{sKVp}, {DUMMY:#x}",
        f"s_lshl_b32 s{sM0KX}, s{sW}, 11", f"s_add_u32 s{sM0KX}, s{sM0KX}, {L_KX}",
        f"s_mov_b32 m0, s{sM0KX}", "s_nop 0",
        f"buffer_load_dwordx4 v{vLIN}, {WS}, s{sKXS} offen lds", f"buffer_load_dwordx4 v{vLIN}, {WS}, s{sKXS} offen offset:1024 lds",
        f"buffer_load_dwordx4 {vr(vVXn,4)}, v{vLIN}, {WS}, s{sVXS} offen", f"buffer_load_dwordx4 {vr(vVXn+4,4)}, v{vLIN}, {WS}, s{sVXS} offen offset:1024")
    A.e(f"s_mov_b32 s{sTAG}, 0")
    A.e(f"s_mov_b32 s{sS}, 0", f"s_mov_b32 s{sAGR}, {AG:#x}", f"s_mov_b32 s{sAGW}, {AG+8192:#x}", f"s_mov_b32 s{sAGZ}, {AG+16384:#x}",
        f"s_mul_i32 s{sT0}, s{sH}, {CS}", f"s_add_u32 s{sRSR}, s{sT0}, {RS:#x}", f"s_add_u32 s{sRSR1}, s{sRSR}, {4096 if RSLAY == 0 else 1024}",
        f"s_mov_b32 s{sRT}, {RS:#x}", f"s_mov_b32 s{sRT+1}, {RS + 4*CS:#x}")
    A.c("wait for the other heads' buffer initialisation")
    wb = A.label("waitbar")
    A.put(wb)
    A.e("v_mov_b32 v126, 0", f"global_load_dword v127, v126, s[{sDBG}:{sDBG+1}] offset:{CTL_BAR} sc1", "s_waitcnt vmcnt(0)", "s_nop 0",
        f"v_readfirstlane_b32 s{sT0}, v127", "s_nop 3", f"s_cmp_lt_u32 s{sT0}, 32", "s_cselect_b64 vcc, -1, 0")
    retry(A, wb, end_label)
    pre_poll(A, sc, True)
    prof_init(A)
    A.put(loop)
    ag_poll(A, end_label)
    mark(A, 0)
    A.e(f"s_cmp_eq_u32 s{sS}, 63", f"s_cbranch_scc1 {fin}")
    if "compute" in DROP:
        A.e("s_barrier", f"s_add_u32 s{sT0}, s{sS}, 1")
        for k in range(4): A.e(f"v_mov_b32 v{vAQ+k}, s{sT0}")
        nop(A, CDELAY)
        if RSTAG: A.e(f"v_and_or_b32 v{vAQ}, v{vAQ}, -2, s{sTAG}")
        for cg in range(2): A.e(f"buffer_store_dwordx4 {vr(vAQ,4)}, v{vRSS}, {WS}, s{sRT+cg} offen{sc}")
    else:
        emit_sched(A, region_a_full(sc), verbose)
    if "compute" not in DROP: mark(A, 6)
    if STOP_AFTER_A: A.e("s_waitcnt vmcnt(0)", f"s_branch {end_label}")
    if "waitst" in DROP: A.e("s_waitcnt vmcnt(0)")
    mark(A, 5) if "compute" in DROP else None
    nop(A, RS_DELAY)
    A.c("---- RS poll and reduce")
    D = vM
    R = D + 12
    if NSET > 1 and "poll" not in DROP:
        sets = [D, D + 16, D + 24][:NSET]
        def issue(b):
            A.e(f"buffer_load_dwordx4 {vr(b,4)}, v{vRSL}, {WS}, s{sRSR} offen sc1", f"buffer_load_dwordx4 {vr(b+4,4)}, v{vRSL}, {WS}, s{sRSR1} offen sc1")
        def consume(b):
            A.e(f"v_mfma_f32_16x16x32_bf16 {vr(R,4)}, {vr(vSELQ,4)}, {vr(b,4)}, 0", f"v_mfma_f32_16x16x32_bf16 {vr(R,4)}, {vr(vSELQ,4)}, {vr(b+4,4)}, {vr(R,4)}")
            sentinel_check(A, b, D + 8)
        poll_loop(A, end_label, sets, issue, consume, lambda b: None)
    else:
        def loads():
            A.e(f"buffer_load_dwordx4 {vr(D,4)}, v{vRSL}, {WS}, s{sRSR} offen sc1", f"buffer_load_dwordx4 {vr(D+4,4)}, v{vRSL}, {WS}, s{sRSR1} offen sc1", "s_waitcnt vmcnt(0)")
        def mf():
            A.e(f"v_mfma_f32_16x16x32_bf16 {vr(R,4)}, {vr(vSELQ,4)}, {vr(D,4)}, 0", f"v_mfma_f32_16x16x32_bf16 {vr(R,4)}, {vr(vSELQ,4)}, {vr(D+4,4)}, {vr(R,4)}")
        def check():
            if RSTAG:
                A.e(f"v_xor_b32 v{D+8}, s{sTAG}, v{D}", f"v_xor_b32 v{D+9}, s{sTAG}, v{D+4}", f"v_or_b32 v{D+8}, v{D+8}, v{D+9}", f"v_and_b32 v{D+8}, 1, v{D+8}",
                    f"v_cmp_eq_u32 vcc, 1, v{D+8}")
            else:
                sentinel_check(A, D, D + 8)
        if MASKED and "poll" not in DROP:
            ok = A.label("rs_ok")
            loads(); mf(); check()
            A.e(f"s_cbranch_vccz {ok}")
            A.put(pr)
            A.e("s_mov_b64 exec, vcc")
            loads(); check()
            retry(A, pr, end_label, 89)
            if C1.TOTAL: A.e("s_add_u32 s89, s89, 1")
            A.e("s_mov_b64 exec, -1", "s_nop 1")
            mf()
            nop(A, 6)
            A.put(ok)
        else:
            A.put(pr)
            loads(); mf(); check()
            if "poll" not in DROP: retry(A, pr, end_label, 89)
    mark(A, 7)
    A.e("s_nop 2")
    for rot in (4, 8):
        for r in range(4): A.e(f"v_add_f32_dpp v{R+r}, v{R+r}, v{R+r} row_ror:{rot} row_mask:0xf bank_mask:0xf")
    A.e(f"v_cvt_pk_bf16_f32 v{R}, v{R}, v{R+1}", f"v_cvt_pk_bf16_f32 v{R+1}, v{R+2}, v{R+3}",
        f"v_min_u32 v{R}, -2, v{R}", f"v_min_u32 v{R+1}, -2, v{R+1}")
    if "tag" in DROP: A.e(f"s_add_u32 s{sT0}, s{sS}, 1", f"v_mov_b32 v{R}, s{sT0}", f"v_mov_b32 v{R+1}, s{sT0}")
    A.e(
        f"buffer_store_dwordx2 {vr(R,2)}, v{vAGS}, {WS}, s{sAGW} offen{sc}")
    mark(A, 8)
    pre_poll(A, sc)
    nop(A, AG_DELAY)
    prof_step(A)
    A.e(f"s_add_u32 s{sS}, s{sS}, 1", f"s_branch {loop}")
    A.put(fin)
    A.c("---- last segment: only k and v of m_63 are needed")
    p = [BAR()]
    m_reads(p)
    publish(p, sKVp)
    for acc, w_ in ((vAK, wk), (vAV, wv)):
        for ks in range(8):
            for t in range(2): p.append(smf(acc + 4 * t, ks, w_(t, ks)))
    for t, kp in ((0, vKP0), (1, vKP1)):
        post_halves(p, vAK + 4 * t); cvt(p, kp, vAK + 4 * t, vAK + 4 * t + 1)
    for t, vm in ((0, vVM0), (1, vVM1)):
        post_halves(p, vAV + 4 * t); cvt(p, vm, vAV + 4 * t, vAV + 4 * t + 1)
    publish(p, sKV)
    emit_sched(A, p)
    prof_out(A)
    A.e(f"s_branch {end_label}")

def gen_chain_kernel(A, name, verbose=False):
    kernel_header(A, name)
    end = A.label("end")
    A.e("s_cmp_ge_u32 s2, 256", f"s_cbranch_scc1 {end}")
    A.e("s_load_dwordx4 s[44:47], s[0:1], 8", "s_load_dwordx4 s[48:51], s[0:1], 24", "s_load_dwordx2 s[52:53], s[0:1], 40", "s_load_dwordx4 s[4:7], s[0:1], 88")
    A.e("v_lshrrev_b32 v40, 6, v0", "s_nop 0", f"v_readfirstlane_b32 s{sW}, v40", "s_waitcnt lgkmcnt(0)")
    srd(A, SWS, sWSP, WS_BYTES); srd(A, SM0, 44, 8192); srd(A, SWQ, 46, 4 << 20); srd(A, SWK, 48, 4 << 20); srd(A, SWV, 50, 4 << 20); srd(A, SWO, 52, 4 << 20)
    A.e(f"s_mov_b32 s{sPOLL}, 0")
    election(A, end)
    lane_consts(A)
    slow = A.label("slowpath")
    A.e(f"s_cmp_eq_u32 s{sMODE}, 2", f"s_cbranch_scc1 {slow}")
    for sc, lab in (("", None), (" sc1", slow)):
        if lab: A.put(lab)
        init_buffers(A, sc)
        load_weights(A)
        step_loop(A, sc, end, verbose and not lab)
    A.put(end)
    A.e("s_endpgm")
```

```python
from asmlib import *
from layout import *
from sched import *

DROP = set()
gWS = 8
gCUR, gNXT = 12, 16
gX = 20
gW, gRB, gHM, gHMN = 32, 33, 34, 35
gCO, gNO = 36, 37
gT0, gT1, gT2, gT3 = 38, 39, 40, 41
gDS, gM0 = 42, 43
gOUT = 44
gPQ, gPK, gPV = 46, 48, 50
gEND = 52
gFIRST = 53
vDMA = 1
vTR = 2
vST = 10
vT = 12
vWF = 32
vACC = 64
vXF = 128

PROF = False
def stamp(A, k):
    if PROF:
        sk = A.label("st")
        A.e("s_memtime s[60:61]", "s_waitcnt lgkmcnt(0)", "s_cmp_lg_u32 s2, 0", f"s_cbranch_scc1 {sk}", f"s_cmp_lg_u32 s{gW}, 0", f"s_cbranch_scc1 {sk}",
            "v_mov_b32 v30, s60", f"s_add_u32 s62, s63, {4*k}" if isinstance(k, int) else "s_nop 0", "v_mov_b32 v31, s62", "global_store_dword v31, v30, s[4:5]")
        A.put(sk)

def nop(A, n):
    while n > 0:
        k = min(n, 16); A.e(f"s_nop {k-1}"); n -= k

def emit_sched(A, prog, verbose=False):
    lines, est, _, _ = schedule(prog, verbose=verbose)
    A.c(f"scheduled region: {len(prog)} instructions, model estimate {est} cycles")
    for l in lines: A.e(l)
    return est

def lane_setup(A, row_stride):
    A.e("v_and_b32 v11, 63, v0")
    A.e("v_lshrrev_b32 v12, 4, v11", "v_and_b32 v13, 15, v11", "v_lshlrev_b32 v14, 2, v12", "v_xor_b32 v13, v13, v14", "v_lshlrev_b32 v13, 4, v13",
        f"v_mul_u32_u24 v12, {row_stride}, v12", f"v_add_u32 v{vDMA}, v12, v13")
    A.e("v_lshrrev_b32 v12, 4, v11",
        "v_and_b32 v13, 15, v11", "v_lshrrev_b32 v13, 2, v13",
        "v_and_b32 v14, 3, v11",
        "v_lshrrev_b32 v15, 1, v12", "v_lshlrev_b32 v15, 3, v15", "v_add_u32 v15, v15, v13", "v_lshlrev_b32 v15, 8, v15",
        "v_and_b32 v16, 1, v12", "v_lshlrev_b32 v16, 1, v16", "v_lshrrev_b32 v17, 1, v14", "v_add_u32 v16, v16, v17",
        "v_and_b32 v17, 1, v14", "v_lshl_add_u32 v15, v17, 3, v15", "v_lshl_add_u32 v15, v16, 4, v15")
    for T in range(4):
        A.e(f"v_xor_b32 v16, {T}, v13", f"v_lshl_add_u32 v{vTR+T}, v16, 6, v15", f"v_add_u32 v{vTR+4+T}, 0x10000, v{vTR+T}")

L_STAGE = 131072
def x_issue(A, row_stride=1024):
    A.c("---- activations: coalesced loads (4 rows x 256 B per instruction), re-laid out through LDS afterwards")
    A.e("v_lshrrev_b32 v12, 4, v11", f"v_mul_u32_u24 v12, {row_stride}, v12", "v_and_b32 v13, 15, v11", "v_lshl_add_u32 v12, v13, 4, v12",
        f"s_mul_i32 s{gT1}, s{gW}, {32*row_stride}", f"s_add_u32 s{gT0}, s{gT0}, s{gT1}")
    for b in range(4):
        for n in range(8):
            A.e(f"buffer_load_dwordx4 {vr(vXF+32*b+4*n,4)}, v12, s[{gX}:{gX+3}], s{gT0} offen offset:{b*256}")
            A.e(f"s_add_u32 s{gT0}, s{gT0}, {4*row_stride}" if n < 7 else f"s_sub_u32 s{gT0}, s{gT0}, {28*row_stride}")

def x_issue_blocks(A, nb):
    A.e("v_lshlrev_b32 v12, 4, v11")
    for b in range(nb):
        for n in range(8):
            if n == 4: A.e(f"s_add_u32 s{gT0}, s{gT0}, 4096")
            A.e(f"buffer_load_dwordx4 {vr(vXF+32*b+4*n,4)}, v12, s[{gWS}:{gWS+3}], s{gT0} offen offset:{(n&3)*1024}")
        A.e(f"s_add_u32 s{gT0}, s{gT0}, 4096")

def load_x_blocks(A, nb, younger):
    stage_addrs(A)
    A.e(f"s_lshl_b32 s{gT1}, s{gW}, 13", f"s_add_u32 s{gT1}, s{gT1}, {L_STAGE}", "v_lshlrev_b32 v20, 4, v11", f"v_add_u32 v20, s{gT1}, v20")
    for b in range(nb):
        A.e(f"s_waitcnt vmcnt({min(63, younger + 8*(nb-1-b))})")
        for n in range(8):
            A.e(f"ds_write_b128 v20, {vr(vXF+32*b+4*n,4)} offset:{n*1024}")
        A.e("s_waitcnt lgkmcnt(0)")
        for kk in range(8):
            A.e(f"v_xor_b32 v{25+(kk&1)}, {32*kk}, v24", f"ds_read_b128 {vr(vXF+32*b+4*kk,4)}, v{25+(kk&1)}")
        A.e("s_waitcnt lgkmcnt(0)")

def stage_addrs(A):
    A.e(f"s_lshl_b32 s{gT1}, s{gW}, 13", f"s_add_u32 s{gT1}, s{gT1}, {L_STAGE}",
        "v_lshrrev_b32 v12, 4, v11", "v_and_b32 v13, 15, v11", "v_xor_b32 v13, v13, v12", "v_lshlrev_b32 v13, 4, v13", "v_lshl_add_u32 v13, v12, 8, v13",
        f"v_add_u32 v20, s{gT1}, v13")
    for k in range(1, 4): A.e(f"v_xor_b32 v{20+k}, {64*k}, v20")
    A.e("v_and_b32 v12, 31, v11", "v_and_b32 v13, 15, v11", "v_lshrrev_b32 v14, 5, v11", "v_xor_b32 v13, v13, v14", "v_lshlrev_b32 v13, 4, v13",
        "v_lshl_add_u32 v13, v12, 8, v13", f"v_add_u32 v24, s{gT1}, v13")

def load_x_ln(A, younger, eps_hex="0x3727c5ac", ln=True, mid=None):
    stage_addrs(A)
    G = vACC
    A.e("v_mov_b32 v13, 0x3f803f80")
    for k in range(4): A.e(f"v_mov_b32 v{vT+4+k}, 0")
    for b in range(4):
        A.e(f"s_waitcnt vmcnt({min(63, younger + 24 - 8*b)})")
        for n in range(8):
            A.e(f"ds_write_b128 v{20+(n&3)}, {vr(vXF+32*b+4*n,4)} offset:{n*1024}")
        A.e("s_waitcnt lgkmcnt(0)")
        for kk in range(8):
            A.e(f"v_xor_b32 v{25+(kk&1)}, {32*kk}, v24", f"ds_read_b128 {vr(vXF+32*b+4*kk,4)}, v{25+(kk&1)}")
        if ln:
            for kk in range(8):
                x = vXF + 32 * b + 4 * kk
                A.e(f"s_waitcnt lgkmcnt({7-kk})")
                A.e(f"v_mfma_f32_32x32x16_bf16 {vr(G,16)}, {vr(x,4)}, {vr(x,4)}, {'0' if b == 0 and kk == 0 else vr(G,16)}")
                for j in range(4): A.e(f"v_dot2_f32_bf16 v{vT+4+j}, v{x+j}, v13, v{vT+4+j}")
        else:
            A.e("s_waitcnt lgkmcnt(0)")
    stamp(A, 2)
    if mid: mid()
    stamp(A, 3)
    if not ln: return
    S, Q = vT + 4, vT + 8
    nop(A, 12)
    A.c("diagonal of the Gram matrix: token j = l&31 sits in lanes with l>>5 == (j>>2)&1, register (j&3) + 4*(j>>3)")
    for bit, sp in ((0, 64), (1, 66), (3, 68), (4, 70), (2, 72)):
        A.e(f"v_lshrrev_b32 v12, {bit}, v11", "v_and_b32 v12, 1, v12", f"v_cmp_eq_u32 s[{sp}:{sp+1}], 1, v12")
    A.e("s_nop 1")
    n = 16
    for sp in (64, 66, 68, 70):
        n //= 2
        for k in range(n): A.e(f"v_cndmask_b32 v{G+k}, v{G+2*k}, v{G+2*k+1}, s[{sp}:{sp+1}]")
    A.e(f"v_mov_b32 v{G+1}, v{G}", "s_nop 1", f"v_permlane32_swap_b32 v{G}, v{G+1}", "s_nop 1", f"v_cndmask_b32 v{Q}, v{G}, v{G+1}, s[72:73]")
    A.e(f"v_add_f32 v{S}, v{S}, v{S+1}", f"v_add_f32 v{S+2}, v{S+2}, v{S+3}", f"v_add_f32 v{S}, v{S}, v{S+2}")
    A.e(f"v_mov_b32 v{S+1}, v{S}", "s_nop 1", f"v_permlane32_swap_b32 v{S}, v{S+1}", "s_nop 1", f"v_add_f32 v{S}, v{S}, v{S+1}")
    A.e(f"v_mul_f32 v{S}, 0x3b000000, v{S}", f"v_mul_f32 v{Q}, 0x3b000000, v{Q}",
        f"v_fma_f32 v{Q}, -v{S}, v{S}, v{Q}", f"v_max_f32 v{Q}, 0, v{Q}", f"v_add_f32 v{Q}, {eps_hex}, v{Q}", f"v_rsq_f32 v{Q}, v{Q}", "s_nop 0",
        f"v_mul_f32 v{S}, v{S}, v{Q}")
    A.e(f"v_mov_b32 v28, v{Q}", f"v_mov_b32 v14, v{S}", "s_mov_b32 s64, 0xffff0000")
    if "dry" in DROP:
        top = A.label("norm"); A.e("s_mov_b32 s65, 0", "s_mov_b64 exec, 0"); A.put(top)
    for k in range(128):
        x = vXF + k; a = vT + 12 + (k & 1) * 2
        if "nopk" in DROP:
            A.e(f"v_lshlrev_b32 v{a}, 16, v{x}", f"v_and_b32 v{a+1}, s64, v{x}", f"v_fma_f32 v{a}, v{a}, v28, -v14", f"v_fma_f32 v{a+1}, v{a+1}, v28, -v14",
                f"v_cvt_pk_bf16_f32 v{x}, v{a}, v{a+1}")
        else:
            A.e(f"v_lshlrev_b32 v{a}, 16, v{x}", f"v_and_b32 v{a+1}, s64, v{x}",
                f"v_pk_fma_f32 v[{a}:{a+1}], v[{a}:{a+1}], v[28:29], v[14:15] op_sel_hi:[1,0,0] neg_lo:[0,0,1] neg_hi:[0,0,1]",
                f"v_cvt_pk_bf16_f32 v{x}, v{a}, v{a+1}")
    if "dry" in DROP:
        sk = A.label("normdone")
        A.e("s_mov_b64 exec, -1", "s_cmp_eq_u32 s65, 1", f"s_cbranch_scc1 {sk}", "s_mov_b32 s65, 1")
        stamp(A, 12)
        A.e(f"s_branch {top}")
        A.put(sk)

def dma_issue_text(srd):
    return f"buffer_load_dwordx4 v{vDMA}, s[{srd}:{srd+3}], s{gDS} offen lds"

def chunk_prog(cc, w_is_a, row_stride, nch=4, cont=False):
    p = [BAR()]
    tc = cc + 3
    srd, col = (gCUR, gCO) if tc < nch else (gNXT, gNO)
    rows0 = 128 * (tc if tc < nch else tc - nch)
    p.append(SAL(f"s_lshl_b32 s{gDS}, s{gW}, 5", [f"s{gDS}"], [f"s{gW}"]))
    p.append(SAL(f"s_add_u32 s{gDS}, s{gDS}, {rows0}", [f"s{gDS}", "scc"], [f"s{gDS}"]))
    p.append(SAL(f"s_mul_i32 s{gDS}, s{gDS}, {row_stride}", [f"s{gDS}"], [f"s{gDS}"]))
    p.append(SAL(f"s_add_u32 s{gDS}, s{gDS}, s{col}", [f"s{gDS}", "scc"], [f"s{gDS}", f"s{col}"]))
    p.append(SAL(f"s_lshl_b32 s{gM0}, s{gW}, 13", [f"s{gM0}", "scc"], [f"s{gW}"]))
    p.append(SAL(f"s_add_u32 s{gM0}, s{gM0}, {(tc & 3) * 32768}", [f"s{gM0}", "scc"], [f"s{gM0}"]))
    def reads(kk):
        for T in range(4):
            for u in range(2):
                d = vWF + (kk & 1) * 16 + 4 * T + 2 * u
                ad = vTR + T + (4 if cc >= 2 else 0)
                p.append(DSR(f"ds_read_b64_tr_b16 {vr(d,2)}, v{ad} offset:{(cc & 1) * 32768 + kk * 4096 + u * 1024}", [vr(d,2)], [f"v{ad}"]))
    reads(0)
    for kk in range(8):
        if kk < 7: reads(kk + 1)
        p.append(SAL(f"s_mov_b32 m0, s{gM0}", ["m0"], [f"s{gM0}"]))
        if "dma" not in DROP:
            d = DMA(dma_issue_text(srd), [f"v{vDMA}", f"s{gDS}", "m0"], tag="afterbar"); p.append(d)
        if kk < 7:
            p.append(SAL(f"s_add_u32 s{gDS}, s{gDS}, {4 * row_stride}", [f"s{gDS}", "scc"], [f"s{gDS}"]))
            p.append(SAL(f"s_add_u32 s{gM0}, s{gM0}, 1024", [f"s{gM0}", "scc"], [f"s{gM0}"]))
        ks = cc * 8 + kk
        x = vr(vXF + 4 * ks, 4)
        for T in range(4):
            w = vr(vWF + (kk & 1) * 16 + 4 * T, 4); acc = vr(vACC + 16 * T, 16)
            first = (ks == 0) and not cont
            a, b = (w, x) if w_is_a else (x, w)
            p.append(MFMA8(f"v_mfma_f32_32x32x16_bf16 {acc}, {a}, {b}, {'0' if first else acc}", [acc], [w, x] + ([] if first else [acc]), first=first))
    return p

def block_body(A, w_is_a, row_stride, verbose=False, nch=4, cont=False, tail=True):
    import sched
    old = sched.VM_GAP, sched.VM_FIRST
    sched.VM_GAP, sched.VM_FIRST = 110, 40
    for cc in range(nch):
        if cc < 3:
            l16 = A.label("w16"); lj = A.label("wj")
            A.e(f"s_cmp_eq_u32 s{gFIRST}, 1", f"s_cbranch_scc1 {l16}", "s_waitcnt vmcnt(24)", f"s_branch {lj}")
            A.put(l16); A.e("s_waitcnt vmcnt(16)"); A.put(lj)
        else:
            A.e("s_waitcnt vmcnt(16)")
        emit_sched(A, chunk_prog(cc, w_is_a, row_stride, nch, cont), verbose)
    sched.VM_GAP, sched.VM_FIRST = old
    if tail: nop(A, 12)

def prologue_ring(A, row_stride):
    top = A.label("ring0"); inner = A.label("ring0i")
    A.e(f"s_mov_b32 s{gT2}, 0")
    A.put(top)
    A.e(f"s_lshl_b32 s{gDS}, s{gW}, 5", f"s_lshl_b32 s{gT3}, s{gT2}, 7", f"s_add_u32 s{gDS}, s{gDS}, s{gT3}", f"s_mul_i32 s{gDS}, s{gDS}, {row_stride}", f"s_add_u32 s{gDS}, s{gDS}, s{gCO}",
        f"s_lshl_b32 s{gM0}, s{gW}, 13", f"s_lshl_b32 s{gT3}, s{gT2}, 15", f"s_add_u32 s{gM0}, s{gM0}, s{gT3}", f"s_mov_b32 s{gT3}, 0")
    A.put(inner)
    A.e(f"s_mov_b32 m0, s{gM0}", f"s_add_u32 s{gT3}, s{gT3}, 1", dma_issue_text(gCUR),
        f"s_add_u32 s{gDS}, s{gDS}, {4*row_stride}", f"s_add_u32 s{gM0}, s{gM0}, 1024", f"s_cmp_lt_u32 s{gT3}, 8", f"s_cbranch_scc1 {inner}")
    A.e(f"s_add_u32 s{gT2}, s{gT2}, 1", f"s_cmp_lt_u32 s{gT2}, 3", f"s_cbranch_scc1 {top}")

def pack_rows(A, relu=False):
    out = []
    for T in range(4):
        for qp in range(2):
            base = vACC + 16 * T + 8 * qp
            if relu:
                for k in range(8): A.e(f"v_max_f32 v{base+k}, 0, v{base+k}")
            d = vWF + (len(out) % 4) * 4
            A.e(f"v_cvt_pk_bf16_f32 v{d}, v{base}, v{base+1}", f"v_cvt_pk_bf16_f32 v{d+1}, v{base+2}, v{base+3}",
                f"v_cvt_pk_bf16_f32 v{d+2}, v{base+4}, v{base+5}", f"v_cvt_pk_bf16_f32 v{d+3}, v{base+6}, v{base+7}", "s_nop 1",
                f"v_permlane32_swap_b32 v{d}, v{d+2}", f"v_permlane32_swap_b32 v{d+1}, v{d+3}")
            yield (T, 2 * qp, d)
            out.append(d)

def epilogue_stage(A, relu=False):
    stage_addrs(A)
    for T, qd, d in pack_rows(A, relu):
        A.e(f"v_xor_b32 v12, {(4*T+qd) << 4}, v24", f"ds_write_b128 v12, {vr(d,4)}")

def epilogue_rows(A, sc=""):
    A.e(f"s_lshl_b32 s{gT1}, s{gW}, 13", f"s_add_u32 s{gT1}, s{gT1}, {L_STAGE}", "v_lshlrev_b32 v13, 4, v11", f"v_add_u32 v12, s{gT1}, v13", "s_waitcnt lgkmcnt(0)")
    for n in range(8): A.e(f"ds_read_b128 {vr(vACC+4*n,4)}, v12 offset:{n*1024}")
    A.e(f"s_add_u32 s{gT0}, s{gOUT}, 4096")
    for n in range(8):
        A.e(f"s_waitcnt lgkmcnt({7-n})", f"buffer_store_dwordx4 {vr(vACC+4*n,4)}, v13, s[{gWS}:{gWS+3}], s{gOUT if n < 4 else gT0} offen offset:{(n&3)*1024}{sc}")

def epilogue_vt(A, sc=""):
    A.e(f"s_lshl_b32 s{gT1}, s{gW}, 13", f"s_add_u32 s{gT1}, s{gT1}, {L_STAGE}",
        "v_lshrrev_b32 v12, 4, v11", "v_and_b32 v13, 15, v11", "v_lshrrev_b32 v14, 2, v13", "v_lshl_add_u32 v14, v12, 2, v14",
        "v_and_b32 v13, 3, v11", "v_lshrrev_b32 v15, 1, v13", "v_xor_b32 v15, v15, v14", "v_lshlrev_b32 v15, 4, v15",
        "v_and_b32 v13, 1, v13", "v_lshl_add_u32 v15, v13, 3, v15", "v_lshl_add_u32 v15, v14, 8, v15", f"v_add_u32 v15, s{gT1}, v15",
        "v_lshlrev_b32 v13, 4, v11", "s_waitcnt lgkmcnt(0)")
    for dt in range(8):
        A.e(f"v_xor_b32 v{16+(dt&1)}, {32*dt}, v15",
            f"ds_read_b64_tr_b16 {vr(vACC+4*dt,2)}, v{16+(dt&1)}", f"ds_read_b64_tr_b16 {vr(vACC+4*dt+2,2)}, v{16+(dt&1)} offset:4096")
    A.e(f"s_add_u32 s{gT0}, s{gOUT}, 4096")
    for dt in range(8):
        A.e(f"s_waitcnt lgkmcnt({min(15, 14-2*dt)})", f"buffer_store_dwordx4 {vr(vACC+4*dt,4)}, v13, s[{gWS}:{gWS+3}], s{gOUT if dt < 4 else gT0} offen offset:{(dt&3)*1024}{sc}")

def set_desc(A, srd, col, hm):
    A.e(f"s_lshr_b32 s{gT0}, s{hm}, 5", f"s_and_b32 s{col}, s{hm}, 31", f"s_lshl_b32 s{col}, s{col}, 8",
        f"s_cmp_eq_u32 s{gT0}, 0", f"s_cselect_b32 s{srd}, s{gPK}, s{gPV}", f"s_cselect_b32 s{srd+1}, s{gPK+1}, s{gPV+1}",
        f"s_cmp_eq_u32 s{gT0}, 2", f"s_cselect_b32 s{srd}, s{gPQ}, s{srd}", f"s_cselect_b32 s{srd+1}, s{gPQ+1}, s{srd+1}",
        f"s_and_b32 s{srd+1}, s{srd+1}, 0xffff",
        f"s_cmp_lt_u32 s{hm}, 96", f"s_cselect_b32 s{srd+2}, 0x400000, 0", f"s_mov_b32 s{srd+3}, 0x20000")

def l2_prefetch(A, step, nblk):
    A.c("---- cooperative L2 prefetch of the weight blocks of this column group")
    A.e("v_lshrrev_b32 v12, 4, v11", "v_mul_u32_u24 v12, 8192, v12", "v_and_b32 v13, 15, v11", "v_lshl_add_u32 v12, v13, 4, v12",
        f"s_mov_b32 s{gT3}, s{gHM}")
    for i in range(nblk):
        set_desc(A, gNXT, gNO, gT3)
        A.e(f"s_lshl_b32 s{gT1}, s{gRB}, 5", f"s_lshl_b32 s{gT2}, s{gW}, 3", f"s_add_u32 s{gT1}, s{gT1}, s{gT2}", f"s_lshl_b32 s{gT1}, s{gT1}, 13",
            f"s_add_u32 s{gT1}, s{gT1}, s{gNO}")
        A.e(f"buffer_load_dwordx4 v[32:35], v12, s[{gNXT}:{gNXT+3}], s{gT1} offen", f"s_add_u32 s{gT1}, s{gT1}, 0x8000",
            f"buffer_load_dwordx4 v[32:35], v12, s[{gNXT}:{gNXT+3}], s{gT1} offen", f"s_add_u32 s{gT3}, s{gT3}, {step}")

def t1_body(A, step, sc="", verbose=False):
    RSTR = 8192
    if PROF: A.e("s_mov_b32 s63, 0")
    stamp(A, 0)
    lane_setup(A, RSTR)
    A.e(f"s_lshl_b32 s{gT0}, s{gRB}, 17")
    x_issue(A)
    set_desc(A, gCUR, gCO, gHM)
    prologue_ring(A, RSTR)
    stamp(A, 1)
    npf = 0
    load_x_ln(A, 24, mid=(lambda: l2_prefetch(A, step, 7)) if "pf" not in DROP else None)
    A.e("s_waitcnt vmcnt(0)")
    A.e(f"s_add_u32 s{gHMN}, s{gHM}, {step}")
    set_desc(A, gNXT, gNO, gHMN)
    A.e(f"s_mov_b32 s{gFIRST}, 1")
    stamp(A, 4)
    if PROF: A.e("s_mov_b32 s63, 20")
    loop = A.label("t1_loop"); isv = A.label("t1_v"); isq = A.label("t1_q"); nxt = A.label("t1_next"); done = A.label("t1_done")
    A.put(loop)
    A.e(f"s_lshl_b32 s{gT0}, s{gRB}, 2", f"s_add_u32 s{gT0}, s{gT0}, s{gW}", f"s_lshl_b32 s{gT0}, s{gT0}, 5", f"s_and_b32 s{gT1}, s{gHM}, 31",
        f"s_add_u32 s{gT0}, s{gT0}, s{gT1}", f"s_lshl_b32 s{gOUT}, s{gT0}, 13", f"s_lshr_b32 s{gT2}, s{gHM}, 5")
    block_body(A, True, RSTR, verbose)
    epilogue_stage(A)
    A.e(f"s_lshr_b32 s{gT2}, s{gHM}, 5", f"s_cmp_eq_u32 s{gT2}, 1", f"s_cbranch_scc1 {isv}")
    A.e(f"s_cmp_eq_u32 s{gT2}, 0", f"s_cselect_b32 s{gT2}, {KB:#x}, {QB:#x}", f"s_add_u32 s{gOUT}, s{gOUT}, s{gT2}")
    if "st" not in DROP: epilogue_rows(A, sc)
    A.e(f"s_branch {nxt}")
    A.put(isv)
    A.e(f"s_add_u32 s{gOUT}, s{gOUT}, {VT:#x}")
    if "st" not in DROP: epilogue_vt(A, sc)
    A.put(nxt)
    stamp(A, 0)
    if PROF: A.e("s_add_u32 s63, s63, 4")
    A.e(f"s_mov_b32 s{gFIRST}, 0")
    for k in range(4): A.e(f"s_mov_b32 s{gCUR+k}, s{gNXT+k}")
    A.e(f"s_mov_b32 s{gCO}, s{gNO}", f"s_mov_b32 s{gHM}, s{gHMN}", f"s_add_u32 s{gHMN}, s{gHMN}, {step}")
    set_desc(A, gNXT, gNO, gHMN)
    A.e(f"s_cmp_lt_u32 s{gHM}, 96", f"s_cbranch_scc1 {loop}")
    A.e("s_waitcnt vmcnt(0)")

def gen_t1_kernel(A, name, verbose=False):
    kernel_header(A, name)
    end = A.label("end")
    A.e("s_cmp_ge_u32 s2, 256", f"s_cbranch_scc1 {end}")
    A.e("s_load_dwordx2 s[22:23], s[0:1], 0", f"s_load_dwordx4 s[24:27], s[0:1], 16", f"s_load_dwordx2 s[28:29], s[0:1], 32", "s_load_dwordx4 s[4:7], s[0:1], 88")
    A.e("v_lshrrev_b32 v12, 6, v0", "s_nop 0", f"v_readfirstlane_b32 s{gW}, v12", "s_waitcnt lgkmcnt(0)")
    A.e(f"s_mov_b32 s{gPQ}, s24", f"s_mov_b32 s{gPQ+1}, s25", f"s_mov_b32 s{gPK}, s26", f"s_mov_b32 s{gPK+1}, s27", f"s_mov_b32 s{gPV}, s28", f"s_mov_b32 s{gPV+1}, s29")
    srd(A, gWS, 6, WS_BYTES); srd(A, gX, 22, 2 << 20)
    A.e(f"s_lshr_b32 s{gT0}, s2, 3", f"s_and_b32 s{gRB}, s{gT0}, 15", f"s_lshr_b32 s{gT0}, s{gT0}, 4", f"s_lshl_b32 s{gT0}, s{gT0}, 3",
        f"s_and_b32 s{gHM}, s2, 7", f"s_add_u32 s{gHM}, s{gHM}, s{gT0}", f"s_cmp_ge_u32 s{gHM}, 14", f"s_cbranch_scc1 {end}")
    t1_body(A, 14, verbose=verbose)
    A.put(end)
    A.e("s_endpgm")
```

```python
QB   = 0x00000000
KB   = 0x01000000
VT   = 0x02000000
KV   = 0x03000000
RS   = 0x04000000
AG   = 0x04100000
DUMMY = 0x04180000
OB   = 0x05000000
HB   = 0x06000000
FB   = 0x06200000
P1   = 0x07000000
P2   = 0x07800000
WS_BYTES = 0x10000000
L_WO = 0
L_KX = 131072
L_MB = 147456
L_Q  = 155648
L_K  = 159744
LDS_BYTES = 163840
```

```python
from asmlib import *
from layout import *
import gemm
from gemm import *

def common_entry(A, end, nwg):
    A.e(f"s_cmp_ge_u32 s2, {nwg}", f"s_cbranch_scc1 {end}")

def gemm_kernel(A, name, kind):
    kernel_header(A, name)
    end = A.label("end")
    nwg = {"wo": 256, "f1": 224, "f2": 256}[kind]
    common_entry(A, end, nwg)
    wptr = {"wo": 40, "f1": 64, "f2": 72}[kind]
    A.e(f"s_load_dwordx2 s[22:23], s[0:1], {wptr}", "s_load_dwordx2 s[6:7], s[0:1], 96")
    A.e("v_lshrrev_b32 v12, 6, v0", "s_nop 0", f"v_readfirstlane_b32 s{gW}, v12", "s_waitcnt lgkmcnt(0)")
    srd(A, gWS, 6, WS_BYTES)
    wbytes = {"wo": 4 << 20, "f1": 512 * 3584, "f2": 1792 * 1024}[kind]
    srd(A, gCUR, 22, wbytes); srd(A, gNXT, 22, wbytes)
    stride = {"wo": 1024, "f1": 3584, "f2": 1024}[kind]
    lane_setup(A, stride)
    A.e(f"s_mov_b32 s{gFIRST}, 1")
    if kind == "f1":
        A.e(f"s_and_b32 s{gRB}, s2, 15", f"s_lshr_b32 s{gHM}, s2, 4", f"s_lshl_b32 s{gCO}, s{gHM}, 8", f"s_mov_b32 s{gNO}, 0", f"s_mov_b32 s{gNXT+2}, 0")
        A.e(f"s_mov_b32 s{gX}, s{gWS}", f"s_mov_b32 s{gX+1}, s{gWS+1}", f"s_mov_b32 s{gX+2}, s{gWS+2}", f"s_mov_b32 s{gX+3}, 0x20000")
        A.e(f"s_lshl_b32 s{gT0}, s{gRB}, 17", f"s_add_u32 s{gT0}, s{gT0}, {HB:#x}")
        x_issue(A)
        prologue_ring(A, stride)
        load_x_ln(A, 24)
        block_body(A, True, stride)
        epilogue_stage(A, relu=True)
        A.e(f"s_lshl_b32 s{gT0}, s{gRB}, 2", f"s_add_u32 s{gT0}, s{gT0}, s{gW}", f"s_mul_i32 s{gT0}, s{gT0}, 14", f"s_add_u32 s{gT0}, s{gT0}, s{gHM}",
            f"s_lshl_b32 s{gOUT}, s{gT0}, 13", f"s_add_u32 s{gOUT}, s{gOUT}, {FB:#x}")
        epilogue_rows(A)
    else:
        A.e(f"s_and_b32 s{gRB}, s2, 15", f"s_lshr_b32 s{gT0}, s2, 4", f"s_and_b32 s{gHM}, s{gT0}, 3", f"s_lshr_b32 s{gHMN}, s{gT0}, 2")
        A.e(f"s_lshl_b32 s{gT2}, s{gRB}, 2", f"s_add_u32 s{gT2}, s{gT2}, s{gW}")
        if kind == "wo":
            nblk = 32; A.e(f"s_lshl_b32 s{gT3}, s{gHMN}, 3")
        else:
            nblk = 14
            A.e(f"s_lshl_b32 s{gT3}, s{gHMN}, 2", f"s_cmp_eq_u32 s{gHMN}, 3", f"s_cselect_b32 s{gT3}, 11, s{gT3}")
        A.e(f"s_mul_i32 s{gEND}, s{gT2}, {nblk}", f"s_add_u32 s{gEND}, s{gEND}, s{gT3}", f"s_lshl_b32 s{gEND}, s{gEND}, 13",
            f"s_add_u32 s{gEND}, s{gEND}, {(OB if kind == 'wo' else FB):#x}")
        A.e(f"s_lshl_b32 s{gCO}, s{gT3}, 17", f"s_lshl_b32 s{gT1}, s{gHM}, 8", f"s_add_u32 s{gCO}, s{gCO}, s{gT1}")
        A.e(f"s_lshl_b32 s{gOUT}, s{gHMN}, 6", f"s_add_u32 s{gOUT}, s{gOUT}, s{gT2}", f"s_lshl_b32 s{gOUT}, s{gOUT}, 2", f"s_add_u32 s{gOUT}, s{gOUT}, s{gHM}",
            f"s_lshl_b32 s{gOUT}, s{gOUT}, 13", f"s_add_u32 s{gOUT}, s{gOUT}, {(P1 if kind == 'wo' else P2):#x}")
        if kind == "wo":
            A.e(f"s_add_u32 s{gNO}, s{gCO}, {4 << 17}", f"s_mov_b32 s{gT0}, s{gEND}")
            x_issue_blocks(A, 4)
            prologue_ring(A, stride)
            load_x_blocks(A, 4, 24)
            block_body(A, True, stride, tail=False)
            A.e(f"s_mov_b32 s{gCO}, s{gNO}", f"s_mov_b32 s{gNXT+2}, 0", f"s_add_u32 s{gT0}, s{gEND}, {4*8192}")
            nop(A, 2)
            x_issue_blocks(A, 4)
            load_x_blocks(A, 4, 0)
            block_body(A, True, stride, cont=True)
            epilogue_stage(A); epilogue_rows(A)
        else:
            three = A.label("three"); join = A.label("join")
            A.e(f"s_mov_b32 s{gNO}, 0", f"s_mov_b32 s{gNXT+2}, 0", f"s_mov_b32 s{gT0}, s{gEND}", f"s_cmp_ge_u32 s{gHMN}, 2", f"s_cbranch_scc1 {three}")
            for nb, lab in ((4, None), (3, three)):
                if lab: A.put(lab)
                x_issue_blocks(A, nb)
                prologue_ring(A, stride)
                load_x_blocks(A, nb, 24)
                block_body(A, True, stride, nch=nb)
                if not lab: A.e(f"s_branch {join}")
            A.put(join)
            epilogue_stage(A); epilogue_rows(A)
    A.put(end)
    A.e("s_endpgm")

def red_kernel(A, name, part, res_ptr_off, res_in_ws, to_out):
    kernel_header(A, name)
    end = A.label("end")
    common_entry(A, end, 512)
    A.e("s_load_dwordx2 s[6:7], s[0:1], 96", "s_load_dwordx2 s[22:23], s[0:1], 0", "s_load_dwordx2 s[24:25], s[0:1], 80", "s_waitcnt lgkmcnt(0)")
    srd(A, 8, 6, WS_BYTES); srd(A, 12, 22, 2 << 20); srd(A, 16, 24, 2 << 20)
    A.e("s_and_b32 s3, s2, 1", "s_lshr_b32 s4, s2, 1", "s_lshl_b32 s5, s4, 13", "s_lshl_b32 s20, s3, 12", "s_add_u32 s5, s5, s20",
        "v_lshrrev_b32 v1, 4, v0", "v_and_b32 v2, 15, v0", "v_xor_b32 v3, v1, v2", "v_and_b32 v3, 15, v3", "v_lshlrev_b32 v3, 4, v3", "v_lshl_add_u32 v3, v1, 8, v3")
    for kq in range(4):
        A.e(f"s_add_u32 s20, s5, {part + kq * (64*4*8192):#x}", f"buffer_load_dwordx4 {vr(8+4*kq,4)}, v3, s[8:11], s20 offen")
    A.e("s_lshr_b32 s20, s4, 2", "s_lshl_b32 s20, s20, 15", "s_lshl_b32 s21, s3, 14", "s_add_u32 s20, s20, s21", "s_and_b32 s21, s4, 3", "s_lshl_b32 s21, s21, 8", "s_add_u32 s20, s20, s21",
        "v_lshlrev_b32 v4, 10, v1", "v_lshl_add_u32 v4, v2, 4, v4")
    if res_in_ws:
        A.e(f"s_add_u32 s21, s20, {HB:#x}", "buffer_load_dwordx4 v[24:27], v4, s[8:11], s21 offen")
    else:
        A.e("buffer_load_dwordx4 v[24:27], v4, s[12:15], s20 offen")
    A.e("s_mov_b32 s26, 0xffff0000", "s_waitcnt vmcnt(0)")
    for j in range(4):
        A.e(f"v_lshlrev_b32 v28, 16, v{8+j}", f"v_and_b32 v29, s26, v{8+j}")
        for kq in range(1, 4):
            A.e(f"v_lshlrev_b32 v30, 16, v{8+4*kq+j}", f"v_and_b32 v31, s26, v{8+4*kq+j}", "v_add_f32 v28, v28, v30", "v_add_f32 v29, v29, v31")
        A.e("v_cvt_pk_bf16_f32 v32, v28, v29", "v_lshlrev_b32 v28, 16, v32", "v_and_b32 v29, s26, v32",
            f"v_lshlrev_b32 v30, 16, v{24+j}", f"v_and_b32 v31, s26, v{24+j}", "v_add_f32 v28, v28, v30", "v_add_f32 v29, v29, v31", f"v_cvt_pk_bf16_f32 v{36+j}, v28, v29")
    if to_out:
        A.e("buffer_store_dwordx4 v[36:39], v4, s[16:19], s20 offen")
    else:
        A.e(f"s_add_u32 s21, s20, {HB:#x}", "buffer_store_dwordx4 v[36:39], v4, s[8:11], s21 offen")
    A.put(end)
    A.e("s_endpgm")

def att_kernel(A, name):
    kernel_header(A, name)
    end = A.label("end")
    common_entry(A, end, 512)
    A.e("s_load_dwordx2 s[6:7], s[0:1], 96", "v_lshrrev_b32 v1, 6, v0", "s_nop 0", "v_readfirstlane_b32 s3, v1", "s_waitcnt lgkmcnt(0)")
    srd(A, 8, 6, WS_BYTES)
    WS = "s[8:11]"
    A.e("s_lshl_b32 s12, s2, 2", "s_add_u32 s12, s12, s3", "s_lshl_b32 s12, s12, 13", "s_mul_i32 s13, s3, 20480")
    A.e("v_and_b32 v1, 63, v0", "v_and_b32 v2, 15, v1", "v_lshrrev_b32 v3, 4, v1", "v_lshlrev_b32 v4, 4, v1")
    for base, lo in ((QB, 0), (KB, 8192)):
        A.e(f"s_add_u32 s14, s12, {base:#x}", f"s_add_u32 s15, s13, {lo}")
        for half in range(2):
            A.e("s_mov_b32 m0, s15", "s_nop 0")
            for n in range(4): A.e(f"buffer_load_dwordx4 v4, {WS}, s14 offen offset:{n*1024} lds")
            A.e("s_add_u32 s14, s14, 4096", "s_add_u32 s15, s15, 4096")
    A.e(f"s_add_u32 s14, s12, {VT:#x}")
    for dt in range(8):
        if dt == 4: A.e("s_add_u32 s14, s14, 4096")
        A.e(f"buffer_load_dwordx4 {vr(64+4*dt,4)}, v4, {WS}, s14 offen offset:{(dt&3)*1024}")
    A.e(f"s_add_u32 s14, s12, {KV:#x}")
    for w in range(4):
        if w == 2: A.e("s_add_u32 s14, s14, 4096")
        A.e(f"buffer_load_dwordx4 {vr(96+4*w,4)}, v4, {WS}, s14 offen offset:{(w&1)*2048}")
    A.e("v_and_b32 v5, 1, v2", "v_mov_b32 v6, 0x3f80", "v_mov_b32 v7, 0x3f800000", "v_cmp_eq_u32 vcc, 1, v5", "s_nop 1", "v_cndmask_b32 v8, v6, v7, vcc",
        "v_mov_b32 v9, v8", "v_mov_b32 v10, v8", "v_mov_b32 v11, v8")
    A.e("v_xor_b32 v5, v3, v2", "v_lshlrev_b32 v5, 4, v5", "v_lshl_add_u32 v5, v2, 8, v5", "v_add_u32 v12, s13, v5")
    A.e("v_lshlrev_b32 v5, 5, v2", "v_lshrrev_b32 v6, 3, v2", "v_lshlrev_b32 v6, 7, v6", "v_xor_b32 v5, v5, v6", "v_lshl_add_u32 v5, v3, 3, v5",
        "s_add_u32 s15, s13, 16384", "v_add_u32 v13, s15, v5")
    A.e("v_lshlrev_b32 v5, 8, v3", "v_lshrrev_b32 v6, 2, v2", "v_lshl_add_u32 v5, v6, 5, v5", "v_and_b32 v6, 3, v2", "v_lshl_add_u32 v5, v6, 3, v5",
        "v_and_b32 v6, 1, v3", "v_lshl_add_u32 v5, v6, 7, v5", "v_add_u32 v14, s15, v5", "v_xor_b32 v15, 128, v14")
    A.e("s_mov_b32 s16, 0x3e0293ee")
    A.e("s_waitcnt vmcnt(0)")
    for w in range(4):
        A.e(f"ds_write_b32 v13, v{96+4*w+1} offset:{w*1024}", f"ds_write_b32 v13, v{96+4*w+3} offset:{w*1024+512}")
    A.e("s_waitcnt lgkmcnt(0)")
    for ks in range(4):
        A.e(f"v_xor_b32 v5, {64*ks}, v12")
        for T in range(2):
            A.e(f"ds_read_b128 {vr(16+16*T+4*ks,4)}, v5 offset:{T*4096}", f"ds_read_b128 {vr(112+16*T+4*ks,4)}, v5 offset:{8192+T*4096}")
        A.e(f"ds_read_b64_tr_b16 {vr(144+4*ks,2)}, v14 offset:{ks*1024}", f"ds_read_b64_tr_b16 {vr(144+4*ks+2,2)}, v15 offset:{ks*1024}")
        A.e("s_waitcnt lgkmcnt(0)")
    def SA(Tq, T): return 160 + 12 * Tq + 4 * T
    for Tq in range(2):
        for T in range(3):
            if T == 1 and Tq == 0: continue
            for ks in range(4):
                a = 144 + 4 * ks if T == 2 else 112 + 16 * T + 4 * ks
                A.e(f"v_mfma_f32_16x16x32_bf16 {vr(SA(Tq,T),4)}, {vr(a,4)}, {vr(16+16*Tq+4*ks,4)}, {'0' if ks == 0 else vr(SA(Tq,T),4)}")
    nop(A, 9)
    A.e("v_lshlrev_b32 v5, 2, v3", "v_mov_b32 v7, 0xff800000")
    for r in range(4):
        A.e(f"v_add_u32 v6, {r}, v5", "v_cmp_le_u32 vcc, v6, v2", "s_nop 1", f"v_cndmask_b32 v{SA(0,0)+r}, v7, v{SA(0,0)+r}, vcc", f"v_cndmask_b32 v{SA(1,1)+r}, v7, v{SA(1,1)+r}, vcc")
    for Tq in range(2):
        vals = [SA(Tq, 0) + r for r in range(4)] + ([SA(1, 1) + r for r in range(4)] if Tq == 1 else []) + [SA(Tq, 2), SA(Tq, 2) + 1]
        A.e(f"v_max_f32 v5, v{vals[0]}, v{vals[1]}")
        for x in vals[2:]: A.e(f"v_max_f32 v5, v5, v{x}")
        for sw in ("v_permlane16_swap_b32", "v_permlane32_swap_b32"):
            A.e("v_mov_b32 v6, v5", "s_nop 1", f"{sw} v5, v6", "s_nop 1", "v_max_f32 v5, v5, v6")
        A.e("v_mul_f32 v5, s16, v5")
        for x in vals: A.e(f"v_fma_f32 v{x}, v{x}, s16, -v5")
        for x in vals: A.e(f"v_exp_f32 v{x}, v{x}")
        A.e("s_nop 0")
        PX = 16 + 8 * Tq; PM = PX + 4
        A.e(f"v_cvt_pk_bf16_f32 v{PX}, v{SA(Tq,0)}, v{SA(Tq,0)+1}", f"v_cvt_pk_bf16_f32 v{PX+1}, v{SA(Tq,0)+2}, v{SA(Tq,0)+3}")
        if Tq == 1: A.e(f"v_cvt_pk_bf16_f32 v{PX+2}, v{SA(1,1)}, v{SA(1,1)+1}", f"v_cvt_pk_bf16_f32 v{PX+3}, v{SA(1,1)+2}, v{SA(1,1)+3}")
        else: A.e(f"v_mov_b32 v{PX+2}, 0", f"v_mov_b32 v{PX+3}, 0")
        A.e(f"v_cvt_pk_bf16_f32 v{PM}, v{SA(Tq,2)}, v{SA(Tq,2)+1}", f"v_mov_b32 v{PM+1}, 0", f"v_mov_b32 v{PM+2}, 0", f"v_mov_b32 v{PM+3}, 0")
    A.e("v_mov_b32 v112, 0", "v_mov_b32 v113, 0", "s_nop 1")
    OA = 116
    for Tq in range(2):
        PX = 16 + 8 * Tq; PM = PX + 4
        A.e(f"v_mfma_f32_16x16x32_bf16 {vr(184+4*Tq,4)}, v[8:11], {vr(PX,4)}, 0")
        for dt in range(8): A.e(f"v_mfma_f32_16x16x32_bf16 {vr(OA+32*Tq+4*dt,4)}, {vr(64+4*dt,4)}, {vr(PX,4)}, 0")
        A.e(f"v_mfma_f32_16x16x32_bf16 {vr(184+4*Tq,4)}, v[8:11], {vr(PM,4)}, {vr(184+4*Tq,4)}")
        for dt in range(8):
            vm = 96 + 2 * dt
            A.e(f"v_mfma_f32_16x16x32_bf16 {vr(OA+32*Tq+4*dt,4)}, {vr(vm,4)}, {vr(PM,4)}, {vr(OA+32*Tq+4*dt,4)}")
    nop(A, 9)
    A.e("v_lshrrev_b32 v5, 1, v3", "v_xor_b32 v5, v5, v2", "v_lshlrev_b32 v5, 4, v5", "v_and_b32 v6, 1, v3", "v_lshl_add_u32 v5, v6, 3, v5",
        "v_lshl_add_u32 v5, v2, 8, v5", "v_add_u32 v12, s13, v5")
    for Tq in range(2):
        L = 184 + 4 * Tq
        A.e(f"v_add_f32 v{L}, v{L}, v{L+1}", f"v_rcp_f32 v{L}, v{L}", "s_nop 0")
        for dt in range(8):
            r = OA + 32 * Tq + 4 * dt
            for k in range(4): A.e(f"v_mul_f32 v{r+k}, v{r+k}, v{L}")
            A.e(f"v_cvt_pk_bf16_f32 v{r}, v{r}, v{r+1}", f"v_cvt_pk_bf16_f32 v{r+1}, v{r+2}, v{r+3}", f"v_xor_b32 v5, {32*dt}, v12", f"ds_write_b64 v5, {vr(r,2)} offset:{Tq*4096}")
    A.e("s_waitcnt lgkmcnt(0)", "v_add_u32 v5, s13, v4")
    for n in range(8): A.e(f"ds_read_b128 {vr(16+4*n,4)}, v5 offset:{n*1024}")
    A.e(f"s_add_u32 s14, s12, {OB:#x}", "s_add_u32 s15, s14, 4096")
    for n in range(8):
        A.e(f"s_waitcnt lgkmcnt({7-n})", f"buffer_store_dwordx4 {vr(16+4*n,4)}, v4, {WS}, s{14 if n < 4 else 15} offen offset:{(n&3)*1024}")
    A.put(end)
    A.e("s_endpgm")
```

```python
import re

def regs(spec):
    out = set()
    for tok in spec:
        m = re.fullmatch(r"([vas])\[(\d+):(\d+)\]", tok)
        if m:
            out |= {f"{m.group(1)}{k}" for k in range(int(m.group(2)), int(m.group(3)) + 1)}
        else:
            out.add(tok)
    return out

class I:
    __slots__ = ("text", "kind", "rd", "wr", "prio", "idx", "preds", "succs", "height", "t", "slot", "dsseq", "tag", "extra")
    def __init__(self, text, kind, wr=(), rd=(), prio=0, tag=None):
        self.text, self.kind = text, kind
        self.wr, self.rd = regs(wr), regs(rd)
        self.prio, self.tag = prio, tag
        self.preds, self.succs = [], []
        self.extra = []

ISSUE = dict(valu=4, trans=8, salu=4, dsr=4, dsw=8, dsw128=14, vml=6, vms=6, dma=16, mfma=8, smf=12, mfma8=8, bar=4, perm=4)
PIPE = dict(mfma=16, smf=16, mfma8=32)
DS_LAT = 100
BAR_LAT = 24
VM_GAP = 64
VM_FIRST = 24
MF = ("mfma", "smf", "mfma8")
VAL = ("valu", "trans", "perm")

def edge_req(p, c, kind):
    if p.tag == "mark": return (4, 0)
    far = (68, 12) if p.kind == "mfma8" else (36, 8)
    if kind == "RAW":
        if p.kind in MF:
            if c.kind in MF and c.acc_chain(p): return (PIPE[p.kind], 0)
            return far
        if p.kind in VAL:
            if c.kind in MF: return (8, 2)
            if c.kind == "perm": return (8, 2)
            if p.kind == "trans": return (12, 1)
            if c.kind == "salu": return (8, 1)
            if any(r.startswith("s") or r == "vcc" for r in p.wr & c.rd):
                return (12, 5 if c.kind in ("vml", "vms", "dma") else 2)
            return (4, 0)
        if p.kind == "dsr": return (DS_LAT, 0)
        if p.kind == "vml": return (600, 0)
        if p.kind == "salu":
            if "m0" in p.wr and c.kind == "dma": return (8, 1)
            return (4, 0)
        return (4, 0)
    if kind == "WAW":
        if p.kind in MF:
            if c.kind in MF and c.acc_chain(p): return (PIPE[p.kind], 0)
            return far
        if p.kind == "dsr": return (DS_LAT, 0)
        if p.kind == "vml": return (600, 0)
        if p.kind in VAL and c.kind in MF: return (8, 2)
        return (4, 0)
    if kind == "WAR":
        if p.kind in MF and c.kind in VAL:
            if p.wr & c.wr: return far
            return (4, 0)
        if p.kind == "vms" and c.kind in VAL: return (8, 2)
        return (4, 0)
    return (4, 0)

def _chain(self, p):
    return p.text.split()[0] == self.text.split()[0] and p.wr == self.wr and p.kind in MF and self.kind in MF and not (p.wr & (self.rd - self.wr)) and self.tag != "noacc"
I.acc_chain = _chain

def schedule(prog, ds_out=0, verbose=False):
    n = len(prog)
    lastw, readers = {}, {}
    last_ds = last_vm = last_bar = last_mf = None
    ds_since_bar = []
    for k, c in enumerate(prog):
        c.idx = k; c.preds = []; c.succs = []
    def dep(p, c, cyc, slots):
        c.preds.append((p, cyc, slots)); p.succs.append((c, cyc, slots))
    for c in prog:
        for r in c.rd:
            if r in lastw: dep(lastw[r], c, *edge_req(lastw[r], c, "RAW"))
        for r in c.wr:
            if r in lastw: dep(lastw[r], c, *edge_req(lastw[r], c, "WAW"))
            for p in readers.get(r, []):
                if p is not c: dep(p, c, *edge_req(p, c, "WAR"))
        for r in c.rd: readers.setdefault(r, []).append(c)
        for r in c.wr:
            lastw[r] = c; readers[r] = [c] if r in c.rd else []
        if c.kind.startswith("ds"):
            if last_ds is not None: dep(last_ds, c, 4, 0)
            if last_bar is not None: dep(last_bar, c, BAR_LAT, 0)
            last_ds = c; ds_since_bar.append(c)
        if c.kind in ("vml", "vms", "dma"):
            if last_vm is not None: dep(last_vm, c, VM_GAP if c.tag == "afterbar" else 4, 0)
            if c.tag == "afterbar" and last_bar is not None: dep(last_bar, c, VM_FIRST, 0)
            last_vm = c
        if c.kind in MF:
            if last_mf is not None: dep(last_mf, c, 4 if (c.tag == "mark" or last_mf.tag == "mark") else PIPE[last_mf.kind], 0)
            last_mf = c
        if c.kind == "bar":
            for p in ds_since_bar:
                dep(p, c, 70 if p.kind.startswith("dsw") else (DS_LAT if p.tag == "prebar" else 4), 0)
            if last_bar is not None: dep(last_bar, c, BAR_LAT, 0)
            last_bar = c; ds_since_bar = []; last_ds = None
    for c in reversed(prog):
        c.height = max([cyc + s.height for s, cyc, _ in c.succs], default=0) + ISSUE[c.kind] + c.prio
    done, out = set(), []
    t = 0; mf_free = 0; slot = 0
    npred = {id(c): len(c.preds) for c in prog}
    ready = [c for c in prog if not c.preds]
    ds_issued = []
    ds_known = -1
    lines = []
    def emit(text, cyc):
        nonlocal t, slot
        lines.append(text); t += cyc; slot += 1
    while ready:
        def earliest(c):
            tt = t
            for p, cyc, _ in c.preds: tt = max(tt, p.t + cyc)
            if c.kind in MF: tt = max(tt, mf_free)
            if c.kind.startswith("ds") and len(ds_issued) >= 15: tt = max(tt, ds_issued[-15].t + DS_LAT)
            return tt
        def slot_gap(c):
            return max([s - (slot - p.slot - 1) for p, _, s in c.preds], default=0)
        cand = sorted(ready, key=lambda c: (max(earliest(c) - t, 0) + 4 * max(slot_gap(c), 0) > 3, -c.height, c.idx))
        avail = [c for c in cand if earliest(c) - t <= 3 and slot_gap(c) <= 0]
        if avail:
            c = avail[0]
        else:
            c = min(ready, key=lambda c: (max(earliest(c) - t, 4 * max(slot_gap(c), 0)), -c.height, c.idx))
        need = -1
        for p, _, _ in c.preds:
            if p.kind == "dsr" and (p.wr & (c.rd | c.wr)): need = max(need, p.dsseq)
            if c.kind == "bar" and (p.kind.startswith("dsw") or p.tag == "prebar"): need = max(need, p.dsseq)
        g = slot_gap(c)
        waited = False
        if need > ds_known:
            cnt = len(ds_issued) - 1 - need
            if cnt > 15: cnt = 15; need = len(ds_issued) - 1 - 15
            emit(f"s_waitcnt lgkmcnt({cnt})", 4); ds_known = need; waited = True
            g = slot_gap(c)
        if g > 0:
            emit(f"s_nop {g-1}", 4 * g); slot += g - 1
        te = earliest(c)
        if te > t: t = te
        c.t, c.slot = t, slot
        if c.kind.startswith("ds"):
            c.dsseq = len(ds_issued); ds_issued.append(c)
        if c.kind in MF and c.tag != "mark": mf_free = t + PIPE[c.kind]
        emit(c.text, ISSUE[c.kind])
        if verbose: lines[-1] += f"    ; t={c.t}"
        ready.remove(c)
        for s, _, _ in c.succs:
            npred[id(s)] -= 1
            if npred[id(s)] == 0: ready.append(s)
    return lines, t, ds_issued, ds_known

def V(text, wr, rd, prio=0): return I(text, "valu", wr, rd, prio)
def TRN(text, wr, rd, prio=0): return I(text, "trans", wr, rd, prio)
def PERM(text, wr, rd): return I(text, "perm", wr, rd)
def SAL(text, wr, rd=(), prio=0): return I(text, "salu", wr, rd, prio)
def MFMA(text, wr, rd, first=False, prio=0): return I(text, "mfma", wr, rd, prio, tag="noacc" if first else None)
def SMF(text, wr, rd, prio=0): return I(text, "smf", wr, rd, prio)
def DSR(text, wr, rd, prio=0, tag=None): return I(text, "dsr", wr, rd, prio, tag)
def DSW(text, rd, wide=False, prio=0): return I(text, "dsw128" if wide else "dsw", (), rd, prio)
def VML(text, wr, rd, tag=None, prio=0): return I(text, "vml", wr, rd, prio, tag)
def VMS(text, rd, tag=None, prio=0): return I(text, "vms", (), rd, prio, tag)
def DMA(text, rd, tag=None, prio=0): return I(text, "dma", (), rd, prio, tag)
def BAR(): return I("s_barrier", "bar")
def MFMA8(text, wr, rd, first=False, prio=0): return I(text, "mfma8", wr, rd, prio, tag="noacc" if first else None)
```

```python
from asmlib import *
from layout import *
import sys, chain, chain3, gemm, post
NAME = "sequential_preLN__memory_aug_recurrent_mem_tr__dense_activation_relu__prompt"
chain3.RSLAY = 1; chain3.RS_DELAY = 80; chain3.AG_DELAY = 30
def header():
    src = open(f"cdna_kernels/{NAME}.s.ref").read().split("\n")
    return [l for l in src[:src.index(next(x for x in src if x.startswith("; Override launch")))]]
A = Asm()
for l in header(): A.raw(l)
launches = [("t1_kernel", 256, 163840), ("chain_kernel", 256, LDS_BYTES), ("att_kernel", 512, 81920), ("wo_kernel", 256, 163840), ("red1_kernel", 512, 0),
            ("f1_kernel", 224, 163840), ("f2_kernel", 256, 163840), ("red2_kernel", 512, 0)]
for k, g, lds in launches: A.raw(f"; @launch kernel={k} grid=({g},1,1) block=(256,1,1) lds={lds}")
A.raw('.amdgcn_target "amdgcn-amd-amdhsa--gfx950"')
A.raw(".text")
gemm.gen_t1_kernel(A, "t1_kernel")
chain3.gen_chain_kernel(A, "chain_kernel")
post.att_kernel(A, "att_kernel")
post.gemm_kernel(A, "wo_kernel", "wo")
post.red_kernel(A, "red1_kernel", P1, 0, False, False)
post.gemm_kernel(A, "f1_kernel", "f1")
post.gemm_kernel(A, "f2_kernel", "f2")
post.red_kernel(A, "red2_kernel", P2, 0, True, True)
A.raw('.section .rodata,"a"')
for k, v, a, s in (("t1_kernel", 256, 256, 102), ("chain_kernel", 512, 256, 102), ("att_kernel", 192, 192, 102), ("wo_kernel", 256, 256, 102), ("red1_kernel", 48, 48, 40),
                ("f1_kernel", 256, 256, 102), ("f2_kernel", 256, 256, 102), ("red2_kernel", 48, 48, 40)):
    A.raw(kernel_desc(k, v, a, s))
out = [a[4:] for a in sys.argv if a.startswith("out=")]
open(out[0] if out else "full.s", "w").write(A.text())
```

```python
from asmlib import *
from layout import *

def nop(A, n):
    while n > 0:
        k = min(n, 16)
        A.e(f"s_nop {k-1}")
        n -= k

sDBG, sWSP = 4, 6
SWS = 8
SWQ, SWK, SWV, SWO, SM0 = 12, 16, 20, 24, 28
sW, sH, sMODE, sS = 32, 33, 34, 35
sAGR, sAGW, sAGZ, sRSW, sRSR, sRSR1, sRSZ = 36, 37, 38, 39, 40, 41, 42
sKXS, sVXS, sKM, sVM, sM0KX = 43, 54, 55, 56, 57
sT0, sT1, sT2, sT3 = 58, 59, 60, 61
sC = 62
CTL_WIN, CTL_SLOW, CTL_BAR = 192, 196, 200

vIDX = 1
vLIN, vRSL, vRSS, vAGS, vKMS, vVMS = 2, 3, 4, 5, 6, 7
vSEL = 8
vAGW0, vAGW1, vAGRe, vAGRo = 12, 13, 14, 15
vQW, vQR0, vQR1, vOW = 16, 17, 18, 19
vKX = 20
vOR0, vOR1, vWO0, vWO1 = 24, 25, 26, 27
vPM = 28
vVM0, vVM1 = 30, 32
vM = 36
vAQ, vAK, vAV = 68, 76, 84
vVXc, vVXn = 92, 100
vP = 108
WV0 = 128

def wq(t, ks): return ar((t * 8 + ks) * 8, 8)
def wk(t, ks): return ar(128 + (t * 8 + ks) * 8, 8)
def wv(t, ks): return vr(WV0 + (t * 8 + ks) * 8, 8)

def election(A, exit_label):
    A.c("---- role election: counters live in d_debug (zero at launch)")
    skip = A.label("elect_skip"); poll = A.label("elect_poll"); got = A.label("elect_got")
    nocas = A.label("elect_nocas"); slow = A.label("elect_slow"); done = A.label("elect_done"); noto = A.label("elect_noto")
    A.e(f"s_cmp_lg_u32 s{sW}, 0", f"s_cbranch_scc1 {skip}")
    A.e(f"s_getreg_b32 s{sT0}, hwreg(HW_REG_XCC_ID)", f"s_and_b32 s{sT0}, s{sT0}, 7")
    A.e("s_mov_b64 exec, 1")
    A.e(f"s_lshl_b32 s{sT1}, s{sT0}, 4", f"v_mov_b32 v40, s{sT1}", "v_mov_b32 v41, 1", "v_mov_b32 v44, 0")
    A.e(f"global_atomic_add v42, v40, v41, s[{sDBG}:{sDBG+1}] sc0", "s_waitcnt vmcnt(0)", "s_nop 0")
    A.e(f"v_readfirstlane_b32 s{sT1}, v42")
    A.e("s_nop 3")
    A.e(f"s_cmp_lg_u32 s{sT1}, 31", f"s_cbranch_scc1 {nocas}")
    A.e(f"s_add_u32 s{sT2}, s{sT0}, 1", f"v_mov_b32 v42, s{sT2}", "v_mov_b32 v43, 0")
    A.e(f"global_atomic_cmpswap v44, v[42:43], s[{sDBG}:{sDBG+1}] offset:{CTL_WIN}", "s_waitcnt vmcnt(0)", "v_mov_b32 v44, 0")
    A.put(nocas)
    A.e(f"s_mov_b32 s{sT3}, 0")
    A.put(poll)
    A.e(f"global_load_dword v42, v44, s[{sDBG}:{sDBG+1}] offset:{CTL_WIN} sc1", "s_waitcnt vmcnt(0)", "s_nop 0")
    A.e(f"v_readfirstlane_b32 s{sT2}, v42", "s_nop 3")
    A.e(f"s_cmp_lg_u32 s{sT2}, 0", f"s_cbranch_scc1 {got}")
    A.e(f"s_add_u32 s{sT3}, s{sT3}, 1", f"s_cmp_lt_u32 s{sT3}, 4096", f"s_cbranch_scc0 {noto}", "s_sleep 2", f"s_branch {poll}")
    A.put(noto)
    A.c("no XCD gathered 32 workgroups in time: switch every workgroup to the placement-independent mode")
    A.e("v_mov_b32 v42, 0x100", "v_mov_b32 v43, 0")
    A.e(f"global_atomic_cmpswap v44, v[42:43], s[{sDBG}:{sDBG+1}] offset:{CTL_WIN}", "s_waitcnt vmcnt(0)", "v_mov_b32 v44, 0")
    A.e(f"s_mov_b32 s{sT3}, 0", f"s_branch {poll}")
    A.put(got)
    A.e(f"s_cmp_eq_u32 s{sT2}, 0x100", f"s_cbranch_scc1 {slow}")
    A.e(f"s_mov_b32 s{sMODE}, 1", f"s_sub_u32 s{sT2}, s{sT2}, 1", f"s_mov_b32 s{sH}, -1")
    A.e(f"s_cmp_lg_u32 s{sT2}, s{sT0}", f"s_cbranch_scc1 {done}")
    A.e(f"s_cmp_ge_u32 s{sT1}, 32", f"s_cbranch_scc1 {done}")
    A.e(f"s_mov_b32 s{sH}, s{sT1}", f"s_branch {done}")
    A.put(slow)
    A.e(f"s_mov_b32 s{sMODE}, 2")
    A.e(f"global_atomic_add v42, v44, v41, s[{sDBG}:{sDBG+1}] offset:{CTL_SLOW} sc0", "s_waitcnt vmcnt(0)", "s_nop 0")
    A.e(f"v_readfirstlane_b32 s{sT1}, v42", "s_nop 3")
    A.e(f"s_mov_b32 s{sH}, -1", f"s_cmp_ge_u32 s{sT1}, 32", f"s_cbranch_scc1 {done}", f"s_mov_b32 s{sH}, s{sT1}")
    A.put(done)
    A.e(f"v_mov_b32 v42, s{sH}", f"v_mov_b32 v43, s{sMODE}", "v_mov_b32 v44, 0", "ds_write_b64 v44, v[42:43]", "s_waitcnt lgkmcnt(0)")
    A.e("s_mov_b64 exec, -1")
    A.put(skip)
    A.e("s_barrier")
    A.e("v_mov_b32 v44, 0", "ds_read_b64 v[42:43], v44", "s_waitcnt lgkmcnt(0)", "s_nop 0")
    A.e(f"v_readfirstlane_b32 s{sH}, v42", f"v_readfirstlane_b32 s{sMODE}, v43", "s_nop 3")
    A.e("s_barrier")
    A.e(f"s_cmp_eq_u32 s{sH}, -1", f"s_cbranch_scc1 {exit_label}")

def lane_consts(A):
    A.c("---- per-lane constants; v40=l v41=i v42=g")
    A.e("v_and_b32 v40, 63, v0", "v_and_b32 v41, 15, v0", "v_lshrrev_b32 v42, 4, v40")
    A.e("v_lshrrev_b32 v43, 1, v41", "v_and_b32 v43, 1, v43")
    A.e("v_lshrrev_b32 v44, 2, v41", "v_lshlrev_b32 v44, 1, v44", "v_and_b32 v45, 1, v41", "v_add_u32 v44, v44, v45")
    A.e(f"v_mov_b32 v{vIDX}, 0x4444", "v_mov_b32 v46, 0xeeee", "v_cmp_eq_u32 vcc, 1, v43", "s_nop 1", f"v_cndmask_b32 v{vIDX}, v{vIDX}, v46, vcc")
    A.e("v_mov_b32 v46, 0x3f80", "v_mov_b32 v47, 0x3f800000", "v_cmp_eq_u32 vcc, 1, v45", "s_nop 1", f"v_cndmask_b32 v{vSEL}, v46, v47, vcc")
    for k in range(1, 4): A.e(f"v_mov_b32 v{vSEL+k}, v{vSEL}")
    A.e(f"s_lshl_b32 s{sT0}, s{sW}, 11", f"v_lshlrev_b32 v{vLIN}, 4, v40", f"v_add_u32 v{vLIN}, s{sT0}, v{vLIN}")
    A.e(f"s_lshl_b32 s{sT0}, s{sW}, 6", f"v_lshlrev_b32 v{vRSL}, 10, v42", f"v_lshl_add_u32 v{vRSL}, v41, 2, v{vRSL}", f"v_add_u32 v{vRSL}, s{sT0}, v{vRSL}")
    A.e(f"s_lshl_b32 s{sT0}, s{sW}, 16", f"s_lshl_b32 s{sT1}, s{sH}, 8", f"s_add_u32 s{sT0}, s{sT0}, s{sT1}",
        f"v_lshlrev_b32 v{vRSS}, 2, v40", f"v_add_u32 v{vRSS}, s{sT0}, v{vRSS}")
    A.e(f"s_lshl_b32 s{sT0}, s{sW}, 11", f"s_lshr_b32 s{sT1}, s{sH}, 2", f"s_lshl_b32 s{sT1}, s{sT1}, 7", f"s_add_u32 s{sT0}, s{sT0}, s{sT1}",
        f"s_and_b32 s{sT1}, s{sH}, 3", f"s_lshl_b32 s{sT1}, s{sT1}, 5", f"s_add_u32 s{sT0}, s{sT0}, s{sT1}",
        f"v_lshlrev_b32 v{vAGS}, 10, v45", f"v_lshl_add_u32 v{vAGS}, v42, 2, v{vAGS}", f"v_add_u32 v{vAGS}, s{sT0}, v{vAGS}",
        "v_mov_b32 v46, 0x70000000", "v_cmp_gt_u32 vcc, 2, v41", "s_nop 1", f"v_cndmask_b32 v{vAGS}, v46, v{vAGS}, vcc")
    A.e(f"s_lshl_b32 s{sT0}, s{sW}, 6", f"v_lshlrev_b32 v{vKMS}, 8, v44", f"v_lshl_add_u32 v{vKMS}, v42, 4, v{vKMS}", f"v_add_u32 v{vKMS}, s{sT0}, v{vKMS}",
        "v_cmp_eq_u32 vcc, 0, v43", "s_nop 1", f"v_cndmask_b32 v{vKMS}, v46, v{vKMS}, vcc")
    A.e(f"s_lshl_b32 s{sT0}, s{sW}, 9", f"v_lshlrev_b32 v{vVMS}, 4, v41", f"v_lshl_add_u32 v{vVMS}, v42, 2, v{vVMS}", f"v_add_u32 v{vVMS}, s{sT0}, v{vVMS}")
    A.e(f"s_lshl_b32 s{sT0}, s{sW}, 1", f"s_and_b32 s{sT1}, s{sT0}, 3", f"s_lshl_b32 s{sT1}, s{sT1}, 2",
        f"v_xor_b32 v46, s{sT1}, v40", f"v_lshlrev_b32 v{vAGW0}, 4, v46",
        f"s_lshl_b32 s{sT0}, s{sT0}, 10", f"s_add_u32 s{sT0}, s{sT0}, {L_MB}", f"v_add_u32 v{vAGW0}, s{sT0}, v{vAGW0}",
        f"v_xor_b32 v{vAGW1}, 64, v{vAGW0}", f"v_add_u32 v{vAGW1}, 1024, v{vAGW1}")
    A.e("v_lshlrev_b32 v46, 1, v42", "v_add_u32 v46, v46, v43",
        "v_and_b32 v47, 1, v44", "v_lshlrev_b32 v47, 2, v47", "v_xor_b32 v46, v46, v47", "v_lshlrev_b32 v46, 4, v46",
        "v_lshrrev_b32 v47, 1, v44", "v_and_b32 v47, 1, v47", "v_lshlrev_b32 v47, 7, v47",
        "v_lshlrev_b32 v48, 10, v44", "v_add_u32 v48, v48, v46", f"v_add_u32 v48, {L_MB}, v48",
        f"v_add_u32 v{vAGRe}, v48, v47", f"v_sub_u32 v{vAGRo}, v48, v47")
    A.e("v_lshlrev_b32 v48, 8, v44", "v_add_u32 v48, v48, v46", "v_add_u32 v48, v48, v47", f"v_add_u32 v{vOR0}, {L_MB}, v48",
        f"v_xor_b32 v{vOR1}, 128, v{vOR0}")
    A.e(f"s_lshr_b32 s{sT0}, s{sW}, 1", f"s_lshl_b32 s{sT0}, s{sT0}, 3", f"s_and_b32 s{sT1}, s{sW}, 1", f"s_lshl_b32 s{sT1}, s{sT1}, 2", f"s_add_u32 s{sT0}, s{sT0}, s{sT1}",
        f"v_add_u32 v46, s{sT0}, v43", "v_and_b32 v47, 3, v44", "v_lshlrev_b32 v47, 2, v47", "v_xor_b32 v46, v46, v47", "v_lshlrev_b32 v46, 4, v46",
        "v_lshlrev_b32 v47, 8, v44", "v_add_u32 v46, v46, v47", "v_lshl_add_u32 v46, v42, 2, v46", f"v_add_u32 v{vOW}, {L_MB}, v46")
    A.e(f"s_lshl_b32 s{sT0}, s{sW}, 10", "v_lshlrev_b32 v46, 5, v41", "v_lshrrev_b32 v47, 3, v41", "v_lshlrev_b32 v47, 7, v47", "v_xor_b32 v46, v46, v47",
        "v_lshl_add_u32 v46, v42, 3, v46", f"v_add_u32 v46, s{sT0}, v46", f"v_add_u32 v{vQW}, {L_Q}, v46")
    A.e("v_lshlrev_b32 v46, 8, v42", "v_lshrrev_b32 v47, 2, v41", "v_lshl_add_u32 v46, v47, 5, v46", "v_and_b32 v47, 3, v41", "v_lshl_add_u32 v46, v47, 3, v46",
        "v_and_b32 v47, 1, v42", "v_lshl_add_u32 v46, v47, 7, v46", f"v_add_u32 v{vQR0}, {L_Q}, v46", f"v_xor_b32 v{vQR1}, 128, v{vQR0}")
    for ks in range(4):
        A.e(f"v_or_b32 v46, {4*ks}, v42", "v_xor_b32 v46, v46, v41", "v_lshlrev_b32 v46, 4, v46", "v_lshl_add_u32 v46, v41, 8, v46", f"v_add_u32 v{vKX+ks}, {L_KX}, v46")
    A.e(f"s_lshl_b32 s{sT0}, s{sW}, 14", f"v_lshlrev_b32 v{vWO0}, 4, v40", f"v_add_u32 v{vWO0}, s{sT0}, v{vWO0}", f"v_add_u32 v{vWO1}, 0x10000, v{vWO0}")
    A.e(f"v_mov_b32 v{vPM+1}, 0", f"v_mov_b32 v{vVM0+1}, 0", f"v_mov_b32 v{vVM1+1}, 0")
    A.e(f"s_mov_b32 s{sC}, 0x3e0293ee")

def init_buffers(A, sc):
    A.c("---- sentinel init of this head's receive areas, m_0 from mem0")
    A.e("v_mov_b32 v48, -1", "v_mov_b32 v49, -1", "v_mov_b32 v50, -1", "v_mov_b32 v51, -1")
    A.e(f"s_lshl_b32 s{sT0}, s{sH}, 13", f"s_add_u32 s{sT0}, s{sT0}, {RS:#x}", f"s_add_u32 s{sT1}, s{sT0}, 0x40000")
    for so in (sT0, sT1):
        A.e(f"buffer_store_dwordx4 v[48:51], v{vLIN}, s[{SWS}:{SWS+3}], s{so} offen{sc}", f"buffer_store_dwordx4 v[48:51], v{vLIN}, s[{SWS}:{SWS+3}], s{so} offen offset:1024{sc}")
    for r in (1, 2):
        A.e(f"s_mov_b32 s{sT0}, {AG + r*8192:#x}")
        A.e(f"buffer_store_dword v48, v{vAGS}, s[{SWS}:{SWS+3}], s{sT0} offen{sc}", f"buffer_store_dword v48, v{vAGS}, s[{SWS}:{SWS+3}], s{sT0} offen offset:16{sc}")
    A.e(f"s_lshl_b32 s{sT0}, s{sW}, 11", f"s_lshl_b32 s{sT1}, s{sH}, 5", f"s_add_u32 s{sT0}, s{sT0}, s{sT1}",
        "v_lshlrev_b32 v46, 10, v45", "v_lshl_add_u32 v46, v42, 3, v46", f"v_add_u32 v46, s{sT0}, v46",
        f"buffer_load_dwordx2 v[52:53], v46, s[{SM0}:{SM0+3}], 0 offen", "s_waitcnt vmcnt(0)",
        "v_min_u32 v52, -2, v52", "v_min_u32 v53, -2, v53", f"s_mov_b32 s{sT0}, {AG:#x}",
        f"buffer_store_dword v52, v{vAGS}, s[{SWS}:{SWS+3}], s{sT0} offen{sc}", f"buffer_store_dword v53, v{vAGS}, s[{SWS}:{SWS+3}], s{sT0} offen offset:16{sc}")
    A.e("s_waitcnt vmcnt(0)", "s_barrier")
    skip = A.label("arrive_skip")
    A.e(f"s_cmp_lg_u32 s{sW}, 0", f"s_cbranch_scc1 {skip}", "s_mov_b64 exec, 1", "v_mov_b32 v46, 0", "v_mov_b32 v47, 1",
        f"global_atomic_add v46, v47, s[{sDBG}:{sDBG+1}] offset:{CTL_BAR}", "s_waitcnt vmcnt(0)", "s_mov_b64 exec, -1")
    A.put(skip)

def load_weights(A):
    A.c("---- weights: 16 chunks of 32 KiB through a 5-slot LDS ring")
    A.e("v_lshlrev_b32 v46, 13, v42", "v_lshl_add_u32 v46, v41, 4, v46")
    A.e("v_lshrrev_b32 v47, 5, v40", "v_lshlrev_b32 v47, 10, v47", "v_and_b32 v48, 31, v40", "v_lshl_add_u32 v47, v48, 4, v47")
    A.e("v_lshrrev_b32 v50, 2, v41", "v_lshl_add_u32 v50, v42, 3, v50", "v_and_b32 v51, 3, v41", "v_lshlrev_b32 v51, 3, v51",
        "v_lshl_add_u32 v48, v50, 8, v51", f"s_lshl_b32 s{sT0}, s{sW}, 6", f"v_add_u32 v48, s{sT0}, v48",
        "v_lshl_add_u32 v49, v50, 9, v51", f"s_lshl_b32 s{sT0}, s{sW}, 7", f"v_add_u32 v49, s{sT0}, v49",
        f"s_lshl_b32 s{sT0}, s{sW}, 13", "v_lshlrev_b32 v50, 4, v40", f"v_add_u32 v50, s{sT0}, v50")
    slot = lambda c: ((c + 3) % 5) * 32768
    def issue(c):
        if c < 12:
            s_ = (SWQ, SWK, SWV)[c // 4]; cc = c % 4
            A.e(f"s_lshl_b32 s{sT0}, s{sW}, 18", f"s_lshl_b32 s{sT1}, s{sH}, 8", f"s_add_u32 s{sT0}, s{sT0}, s{sT1}", f"s_add_u32 s{sT0}, s{sT0}, {128*cc*8192:#x}",
                f"s_lshl_b32 s{sT1}, s{sW}, 13", f"s_add_u32 s{sT1}, s{sT1}, {slot(c)}")
            for n in range(8):
                A.e(f"s_mov_b32 m0, s{sT1}", "s_nop 0", f"buffer_load_dwordx4 v46, s[{s_}:{s_+3}], s{sT0} offen lds")
                if n < 7: A.e(f"s_add_u32 s{sT0}, s{sT0}, 0x8000", f"s_add_u32 s{sT1}, s{sT1}, 1024")
        else:
            cc = c - 12; ksp = cc >> 1; cp = cc & 1
            A.e(f"s_lshl_b32 s{sT0}, s{sW}, 14", f"s_lshl_b32 s{sT1}, s{sH}, 17", f"s_add_u32 s{sT0}, s{sT0}, s{sT1}", f"s_add_u32 s{sT0}, s{sT0}, {64*ksp*1024 + cp*512:#x}",
                f"s_lshl_b32 s{sT1}, s{sW}, 13", f"s_add_u32 s{sT1}, s{sT1}, {slot(c)}")
            for n in range(8):
                A.e(f"s_mov_b32 m0, s{sT1}", "s_nop 0", f"buffer_load_dwordx4 v47, s[{SWO}:{SWO+3}], s{sT0} offen lds")
                if n < 7: A.e(f"s_add_u32 s{sT0}, s{sT0}, 0x800", f"s_add_u32 s{sT1}, s{sT1}, 1024")
    for c in range(4): issue(c)
    for c in range(16):
        A.e(f"s_waitcnt vmcnt({8 * (min(c + 3, 15) - c)})", "s_barrier")
        if c + 4 < 16: issue(c + 4)
        if c < 12:
            cc = c % 4
            A.e(f"v_add_u32 v51, {slot(c)}, v48")
            for kk in range(2):
                ks = 2 * cc + kk
                for t in range(2):
                    for u in range(4):
                        off = (64 * kk + 32 * (u >> 1) + 4 * (u & 1)) * 256 + t * 32
                        base = (t * 8 + ks) * 8 + 2 * u
                        dst = ar(base, 2) if c < 4 else ar(128 + base, 2) if c < 8 else vr(WV0 + base, 2)
                        A.e(f"ds_read_b64_tr_b16 {dst}, v51 offset:{off}")
            A.e("s_waitcnt lgkmcnt(0)")
        else:
            A.e(f"v_add_u32 v51, {slot(c)}, v49")
            for tl in range(4):
                for u in range(4):
                    off = (32 * (u >> 1) + 4 * (u & 1)) * 512 + tl * 32
                    A.e(f"ds_read_b64_tr_b16 {vr(64 + tl * 8 + 2 * u, 2)}, v51 offset:{off}")
            A.e("s_waitcnt lgkmcnt(0)", "s_barrier", f"v_add_u32 v51, {slot(c)}, v50")
            for tl in range(4):
                for u in range(2):
                    A.e(f"ds_write_b128 v51, {vr(64 + tl * 8 + 4 * u, 4)} offset:{tl * 2048 + u * 1024}")
            A.e("s_waitcnt lgkmcnt(0)")
    A.e("s_barrier")

PROF = False
NMARK = 9
sTM = 64
sACC = 82
MARKS = None
TOTAL = False
def mark(A, k):
    if PROF and (MARKS is None or k in MARKS): A.e(f"s_memtime s[{sTM+2*k}:{sTM+2*k+1}]")
def prof_init(A):
    if TOTAL: A.e("s_memtime s[90:91]", "s_waitcnt lgkmcnt(0)", "s_mov_b32 s88, 0", "s_mov_b32 s89, 0")
    if PROF:
        for k in range(NMARK + 1): A.e(f"s_mov_b32 s{sACC+k}, 0")
        A.e(f"s_memtime s[{sTM}:{sTM+1}]", "s_waitcnt lgkmcnt(0)", f"s_mov_b32 s92, s{sTM}")
def prof_step(A):
    if PROF:
        A.e("s_waitcnt lgkmcnt(0)")
        used = [k for k in range(NMARK) if MARKS is None or k in MARKS]
        prev = "s92"
        for k in used:
            A.e(f"s_sub_u32 s93, s{sTM+2*k}, {prev}", f"s_add_u32 s{sACC+k}, s{sACC+k}, s93")
            prev = f"s{sTM+2*k}"
        A.e(f"s_mov_b32 s92, {prev}")
def prof_out(A):
    if TOTAL:
        skip = A.label("totskip")
        A.e("s_memtime s[92:93]", "s_waitcnt lgkmcnt(0)", "s_sub_u32 s92, s92, s90")
        A.e(f"s_cmp_lg_u32 s{sW}, 0", f"s_cbranch_scc1 {skip}", f"s_cmp_lg_u32 s{sH}, 0", f"s_cbranch_scc1 {skip}")
        A.e("v_mov_b32 v40, 0x04182040", "v_mov_b32 v41, s92", "global_store_dword v40, v41, s[6:7]")
        A.put(skip)
        A.e(f"s_lshl_b32 s93, s{sH}, 2", f"s_add_u32 s93, s93, s{sW}", "s_lshl_b32 s93, s93, 4", "s_add_u32 s93, s93, 0x04181000",
            "v_mov_b32 v40, 0", "v_mov_b32 v42, s88", "v_mov_b32 v43, s89", "v_mov_b32 v44, s92", "v_mov_b32 v45, 0", "s_mov_b64 exec, 1",
            "buffer_store_dwordx4 v[42:45], v40, s[8:11], s93 offen", "s_mov_b64 exec, -1")
    if PROF:
        skip = A.label("profskip")
        A.e(f"s_cmp_lg_u32 s{sW}, 0", f"s_cbranch_scc1 {skip}", f"s_cmp_lg_u32 s{sH}, 0", f"s_cbranch_scc1 {skip}")
        A.e("v_mov_b32 v40, 0x04182080")
        for k in range(NMARK):
            A.e(f"v_mov_b32 v41, s{sACC+k}", f"global_store_dword v40, v41, s[6:7] offset:{4*k}")
        A.e(f"v_mov_b32 v41, s{sPOLL}", f"global_store_dword v40, v41, s[6:7] offset:{4*NMARK}")
        A.put(skip)
sPOLL = 63
CNT = None
BACKOFF = 0
def retry(A, again, bail, cnt=None):
    ok = A.label("ok")
    A.e(f"s_cbranch_vccz {ok}")
    if cnt is not None and TOTAL: A.e(f"s_add_u32 s{cnt}, s{cnt}, 1")
    if cnt is not None and BACKOFF: A.e(f"s_nop {BACKOFF-1}")
    A.e(f"s_add_u32 s{sPOLL}, s{sPOLL}, 1", f"s_cmp_lt_u32 s{sPOLL}, 0x80000", f"s_cbranch_scc1 {again}", f"s_branch {bail}")
    A.put(ok)

def step_loop(A, sc, end_label):
    WS = f"s[{SWS}:{SWS+3}]"
    loop = A.label("step"); pa = A.label("poll_ag"); pr = A.label("poll_rs"); first = A.label("first")
    A.c("---- initial prefetch: K_x(0) -> buffer 0, V_x(0)")
    A.e(f"s_lshl_b32 s{sT0}, s{sH}, 13", f"s_add_u32 s{sKXS}, s{sT0}, {KB:#x}", f"s_add_u32 s{sVXS}, s{sT0}, {VT:#x}",
        f"s_lshl_b32 s{sT0}, s{sH}, 11", f"s_add_u32 s{sKM}, s{sT0}, {KM:#x}", f"s_add_u32 s{sVM}, s{sT0}, {VM:#x}",
        f"s_lshl_b32 s{sM0KX}, s{sW}, 11", f"s_add_u32 s{sM0KX}, s{sM0KX}, {L_KX}",
        f"s_mov_b32 m0, s{sM0KX}", "s_nop 0",
        f"buffer_load_dwordx4 v{vLIN}, {WS}, s{sKXS} offen lds", f"buffer_load_dwordx4 v{vLIN}, {WS}, s{sKXS} offen offset:1024 lds",
        f"buffer_load_dwordx4 {vr(vVXn,4)}, v{vLIN}, {WS}, s{sVXS} offen", f"buffer_load_dwordx4 {vr(vVXn+4,4)}, v{vLIN}, {WS}, s{sVXS} offen offset:1024")
    A.e(f"s_mov_b32 s{sS}, 0", f"s_mov_b32 s{sAGR}, {AG:#x}", f"s_mov_b32 s{sAGW}, {AG+8192:#x}", f"s_mov_b32 s{sAGZ}, {AG+16384:#x}",
        f"s_mov_b32 s{sRSW}, {RS:#x}", f"s_lshl_b32 s{sT0}, s{sH}, 13", f"s_add_u32 s{sRSR}, s{sT0}, {RS:#x}", f"s_add_u32 s{sRSR1}, s{sRSR}, 4096",
        f"s_add_u32 s{sRSZ}, s{sRSR}, 0x40000")
    A.c("wait for the other heads' buffer initialisation")
    wb = A.label("waitbar")
    A.put(wb)
    A.e("v_mov_b32 v46, 0", f"global_load_dword v47, v46, s[{sDBG}:{sDBG+1}] offset:{CTL_BAR} sc1", "s_waitcnt vmcnt(0)", "s_nop 0",
        f"v_readfirstlane_b32 s{sT0}, v47", "s_nop 3", f"s_cmp_lt_u32 s{sT0}, 32", "s_cselect_b64 vcc, -1, 0")
    retry(A, wb, end_label)
    prof_init(A)
    A.put(loop)
    A.c("---- AG poll: m_s")
    A.put(pa)
    P = vP
    A.e(f"buffer_load_dwordx4 {vr(P,4)}, v{vLIN}, {WS}, s{sAGR} offen sc1", f"buffer_load_dwordx4 {vr(P+4,4)}, v{vLIN}, {WS}, s{sAGR} offen offset:1024 sc1",
        "s_waitcnt vmcnt(0)",
        f"v_max3_u32 v{P+8}, v{P}, v{P+1}, v{P+2}", f"v_max3_u32 v{P+9}, v{P+3}, v{P+4}, v{P+5}", f"v_max3_u32 v{P+8}, v{P+8}, v{P+6}, v{P+7}",
        f"v_max_u32 v{P+8}, v{P+8}, v{P+9}", f"v_cmp_eq_u32 vcc, -1, v{P+8}")
    retry(A, pa, end_label)
    mark(A, 0)
    A.e(f"ds_write_b128 v{vAGW0}, {vr(P,4)}", f"ds_write_b128 v{vAGW1}, {vr(P+4,4)}", "s_waitcnt lgkmcnt(0)", "s_barrier")
    for ks in range(8):
        A.e(f"ds_read_b128 {vr(vM+4*ks,4)}, v{vAGRe if ks % 2 == 0 else vAGRo} offset:{ks*128}")
    A.c("resets of consumed exchange buffers, prefetch for the next step")
    A.e(f"v_mov_b32 v{P}, -1", f"v_mov_b32 v{P+1}, -1", f"v_mov_b32 v{P+2}, -1", f"v_mov_b32 v{P+3}, -1")
    A.e(f"s_cmp_eq_u32 s{sS}, 0", f"s_cbranch_scc1 {first}")
    A.e(f"buffer_store_dwordx4 {vr(P,4)}, v{vLIN}, {WS}, s{sRSZ} offen{sc}", f"buffer_store_dwordx4 {vr(P,4)}, v{vLIN}, {WS}, s{sRSZ} offen offset:1024{sc}",
        f"buffer_store_dword v{P}, v{vAGS}, {WS}, s{sAGZ} offen{sc}", f"buffer_store_dword v{P}, v{vAGS}, {WS}, s{sAGZ} offen offset:16{sc}")
    A.put(first)
    for k in range(8): A.e(f"v_mov_b32 v{vVXc+k}, v{vVXn+k}")
    A.e(f"s_add_u32 s{sKXS}, s{sKXS}, 0x40000", f"s_add_u32 s{sVXS}, s{sVXS}, 0x40000", f"s_xor_b32 s{sM0KX}, s{sM0KX}, 0x2000",
        f"s_mov_b32 m0, s{sM0KX}", "s_nop 0",
        f"buffer_load_dwordx4 v{vLIN}, {WS}, s{sKXS} offen lds", f"buffer_load_dwordx4 v{vLIN}, {WS}, s{sKXS} offen offset:1024 lds",
        f"buffer_load_dwordx4 {vr(vVXn,4)}, v{vLIN}, {WS}, s{sVXS} offen", f"buffer_load_dwordx4 {vr(vVXn+4,4)}, v{vLIN}, {WS}, s{sVXS} offen offset:1024")
    for k in range(24): A.e(f"v_mov_b32 v{vAQ+k}, 0")
    A.e("s_waitcnt lgkmcnt(0)", "s_nop 1")
    mark(A, 1)
    for ks in range(8):
        a = vr(vM + 4 * ks, 4)
        for t in range(2): A.e(f"v_smfmac_f32_16x16x64_bf16 {vr(vAQ+4*t,4)}, {a}, {wq(t,ks)}, v{vIDX}")
        for t in range(2): A.e(f"v_smfmac_f32_16x16x64_bf16 {vr(vAK+4*t,4)}, {a}, {wk(t,ks)}, v{vIDX}")
        for t in range(2): A.e(f"v_smfmac_f32_16x16x64_bf16 {vr(vAV+4*t,4)}, {a}, {wv(t,ks)}, v{vIDX}")
    nop(A, 9)
    mark(A, 2)
    A.c("half sums, pack, exchange q and k through LDS")
    for base, dst in ((vAQ, P), (vAK, P + 4), (vAV, P + 8)):
        for t in range(2):
            r = base + 4 * t
            A.e(f"v_add_f32 v{r}, v{r}, v{r+2}", f"v_add_f32 v{r+1}, v{r+1}, v{r+3}")
    A.e(f"v_cvt_pk_bf16_f32 v{P}, v{vAQ}, v{vAQ+1}", f"v_cvt_pk_bf16_f32 v{P+2}, v{vAQ+4}, v{vAQ+5}",
        f"v_cvt_pk_bf16_f32 v{P+4}, v{vAK}, v{vAK+1}", f"v_cvt_pk_bf16_f32 v{P+5}, v{vAK+4}, v{vAK+5}",
        f"v_cvt_pk_bf16_f32 v{vVM0}, v{vAV}, v{vAV+1}", f"v_cvt_pk_bf16_f32 v{vVM1}, v{vAV+4}, v{vAV+5}",
        f"v_mov_b32 v{P+1}, v{P}", f"v_mov_b32 v{P+3}, v{P+2}")
    A.e(f"ds_write_b64 v{vQW}, {vr(P,2)}", f"ds_write_b64 v{vQW}, {vr(P+2,2)} offset:512",
        f"ds_write_b32 v{vQW}, v{P+4} offset:4096", f"ds_write_b32 v{vQW}, v{P+5} offset:4608")
    A.e(f"buffer_store_dword v{vVM0}, v{vVMS}, {WS}, s{sVM} offen sc1", f"buffer_store_dword v{vVM1}, v{vVMS}, {WS}, s{sVM} offen offset:256 sc1")
    A.e("s_waitcnt lgkmcnt(0)", "s_barrier")
    Qo, KMo = vM, vM + 16
    KXo = [68, 72, 76, 80, 84, 88, P + 12, P + 16]
    for ks in range(4):
        A.e(f"ds_read_b64_tr_b16 {vr(Qo+4*ks,2)}, v{vQR0} offset:{ks*1024}", f"ds_read_b64_tr_b16 {vr(Qo+4*ks+2,2)}, v{vQR1} offset:{ks*1024}",
            f"ds_read_b64_tr_b16 {vr(KMo+4*ks,2)}, v{vQR0} offset:{4096+ks*1024}", f"ds_read_b64_tr_b16 {vr(KMo+4*ks+2,2)}, v{vQR1} offset:{4096+ks*1024}")
    for ks in range(4):
        for T in range(2):
            A.e(f"ds_read_b128 {vr(KXo[T*4+ks],4)}, v{vKX+ks} offset:{T*4096}")
    for ks in range(4): A.e(f"v_xor_b32 v{vKX+ks}, 0x2000, v{vKX+ks}")
    A.e("s_waitcnt lgkmcnt(0)")
    mark(A, 3)
    A.c("publish k_mem: wave w stores k-step w")
    lab = [A.label("km") for _ in range(5)]
    for wv_ in range(4):
        A.e(f"s_cmp_lg_u32 s{sW}, {wv_}", f"s_cbranch_scc1 {lab[wv_]}", f"buffer_store_dwordx4 {vr(KMo+4*wv_,4)}, v{vKMS}, {WS}, s{sKM} offen sc1", f"s_branch {lab[4]}")
        A.put(lab[wv_])
    A.put(lab[4])
    A.e(f"s_add_u32 s{sKM}, s{sKM}, 0x10000", f"s_add_u32 s{sVM}, s{sVM}, 0x10000")
    fin = A.label("fin")
    A.e(f"s_cmp_eq_u32 s{sS}, 63", f"s_cbranch_scc1 {fin}")
    SA = P
    for ks in range(4):
        c0 = "0" if ks == 0 else None
        for T in range(2):
            A.e(f"v_mfma_f32_16x16x32_bf16 {vr(SA+4*T,4)}, {vr(KXo[T*4+ks],4)}, {vr(Qo+4*ks,4)}, {c0 or vr(SA+4*T,4)}")
        A.e(f"v_mfma_f32_16x16x32_bf16 {vr(SA+8,4)}, {vr(KMo+4*ks,4)}, {vr(Qo+4*ks,4)}, {c0 or vr(SA+8,4)}")
    nop(A, 9)
    A.c("softmax over 8 + 2 keys per lane and the four lane groups")
    T0, T1 = vM, vM + 1
    A.e(f"v_max3_f32 v{T0}, v{SA}, v{SA+1}, v{SA+2}", f"v_max3_f32 v{T1}, v{SA+3}, v{SA+4}, v{SA+5}", f"v_max3_f32 v{T0}, v{T0}, v{SA+6}, v{SA+7}",
        f"v_max3_f32 v{T1}, v{T1}, v{SA+8}, v{SA+9}", f"v_max_f32 v{T0}, v{T0}, v{T1}")
    for sw in ("v_permlane16_swap_b32", "v_permlane32_swap_b32"):
        A.e(f"v_mov_b32 v{T1}, v{T0}", "s_nop 1", f"{sw} v{T0}, v{T1}", "s_nop 1", f"v_max_f32 v{T0}, v{T0}, v{T1}")
    A.e(f"v_mul_f32 v{T0}, s{sC}, v{T0}")
    for k in range(10): A.e(f"v_fma_f32 v{SA+k}, v{SA+k}, s{sC}, -v{T0}")
    for k in range(10): A.e(f"v_exp_f32 v{SA+k}, v{SA+k}")
    PX = vM + 4
    A.e("s_nop 0")
    for k in range(4): A.e(f"v_cvt_pk_bf16_f32 v{PX+k}, v{SA+2*k}, v{SA+2*k+1}")
    A.e(f"v_cvt_pk_bf16_f32 v{vPM}, v{SA+8}, v{SA+9}", "s_nop 1")
    mark(A, 4)
    OA, LA = vM + 8, vM + 16
    for t in range(2):
        A.e(f"v_mfma_f32_16x16x32_bf16 {vr(OA+4*t,4)}, {vr(vVXc+4*t,4)}, {vr(PX,4)}, 0")
    A.e(f"v_mfma_f32_16x16x32_bf16 {vr(LA,4)}, {vr(vSEL,4)}, {vr(PX,4)}, 0")
    A.e(f"v_mfma_f32_16x16x16_bf16 {vr(OA,4)}, {vr(vVM0,2)}, {vr(vPM,2)}, {vr(OA,4)}", f"v_mfma_f32_16x16x16_bf16 {vr(OA+4,4)}, {vr(vVM1,2)}, {vr(vPM,2)}, {vr(OA+4,4)}",
        f"v_mfma_f32_16x16x16_bf16 {vr(LA,4)}, {vr(vSEL,2)}, {vr(vPM,2)}, {vr(LA,4)}")
    nop(A, 9)
    A.e(f"v_add_f32 v{LA}, v{LA}, v{LA+1}", f"v_rcp_f32 v{LA}, v{LA}", f"v_cmp_eq_u32 vcc, 0x4444, v{vIDX}", "s_nop 1")
    for t in range(2):
        r = OA + 4 * t
        A.e(f"v_cndmask_b32 v{r}, v{r+2}, v{r}, vcc", f"v_cndmask_b32 v{r+1}, v{r+3}, v{r+1}, vcc",
            f"v_mul_f32 v{r}, v{r}, v{LA}", f"v_mul_f32 v{r+1}, v{r+1}, v{LA}", f"v_cvt_pk_bf16_f32 v{r}, v{r}, v{r+1}", f"ds_write_b32 v{vOW}, v{r} offset:{t*32}")
    A.e("s_waitcnt lgkmcnt(0)", "s_barrier")
    mark(A, 5)
    OO = vM
    A.e(f"ds_read_b128 {vr(OO,4)}, v{vOR0}", f"ds_read_b128 {vr(OO+4,4)}, v{vOR1}")
    WB = [vM + 8, vM + 16, vM + 24, P, P + 8]
    ACC = 68
    for half in range(2):
        for k in range(16): A.e(f"v_mov_b32 v{ACC+k}, 0")
        for Tl in range(4):
            T = half * 4 + Tl
            for ksp in range(2):
                b = WB[(Tl * 2 + ksp) % 2]
                wo = vWO0 if ksp == 0 else vWO1
                A.e(f"ds_read_b128 {vr(b,4)}, v{wo} offset:{T*2048}", f"ds_read_b128 {vr(b+4,4)}, v{wo} offset:{T*2048+1024}", "s_waitcnt lgkmcnt(0)",
                    f"v_smfmac_f32_16x16x64_bf16 {vr(ACC+4*Tl,4)}, {vr(OO+4*ksp,4)}, {vr(b,8)}, v{vIDX}")
        nop(A, 9)
        for Tl in range(4):
            T = half * 4 + Tl; r = ACC + 4 * Tl
            A.e(f"v_add_f32 v{r}, v{r}, v{r+2}", f"v_add_f32 v{r+1}, v{r+1}, v{r+3}", f"v_cvt_pk_bf16_f32 v{r}, v{r}, v{r+1}", f"v_min_u32 v{r}, -2, v{r}",
                f"s_add_u32 s{sT0}, s{sRSW}, {T*8192}", f"buffer_store_dword v{r}, v{vRSS}, {WS}, s{sT0} offen{sc}")
        A.e("s_nop 1")
    mark(A, 6)
    A.c("---- RS poll and reduce")
    A.put(pr)
    D = vM
    for st in range(2):
        for q in range(4):
            A.e(f"buffer_load_dword v{D+4*st+q}, v{vRSL}, {WS}, s{sRSR if st == 0 else sRSR1} offen offset:{q*256} sc1")
    A.e("s_waitcnt vmcnt(0)",
        f"v_max3_u32 v{D+8}, v{D}, v{D+1}, v{D+2}", f"v_max3_u32 v{D+9}, v{D+3}, v{D+4}, v{D+5}", f"v_max3_u32 v{D+8}, v{D+8}, v{D+6}, v{D+7}",
        f"v_max_u32 v{D+8}, v{D+8}, v{D+9}", f"v_cmp_eq_u32 vcc, -1, v{D+8}")
    retry(A, pr, end_label)
    mark(A, 7)
    R = D + 12
    A.e(f"v_mfma_f32_16x16x32_bf16 {vr(R,4)}, {vr(D,4)}, {vr(vSEL,4)}, 0", f"v_mfma_f32_16x16x32_bf16 {vr(R,4)}, {vr(D+4,4)}, {vr(vSEL,4)}, {vr(R,4)}")
    nop(A, 9)
    A.e(f"v_cvt_pk_bf16_f32 v{R}, v{R}, v{R+1}", f"v_cvt_pk_bf16_f32 v{R+2}, v{R+2}, v{R+3}", f"v_min_u32 v{R}, -2, v{R}", f"v_min_u32 v{R+2}, -2, v{R+2}",
        f"buffer_store_dword v{R}, v{vAGS}, {WS}, s{sAGW} offen{sc}", f"buffer_store_dword v{R+2}, v{vAGS}, {WS}, s{sAGW} offen offset:16{sc}")
    mark(A, 8)
    prof_step(A)
    A.c("advance rings")
    A.e(f"s_mov_b32 s{sT0}, s{sAGZ}", f"s_mov_b32 s{sAGZ}, s{sAGR}", f"s_mov_b32 s{sAGR}, s{sAGW}", f"s_mov_b32 s{sAGW}, s{sT0}",
        f"s_mov_b32 s{sRSZ}, s{sRSR}", f"s_xor_b32 s{sRSW}, s{sRSW}, 0x40000", f"s_xor_b32 s{sRSR}, s{sRSR}, 0x40000", f"s_xor_b32 s{sRSR1}, s{sRSR1}, 0x40000",
        f"s_add_u32 s{sS}, s{sS}, 1", f"s_branch {loop}")
    A.put(fin)
    prof_out(A)
    A.e(f"s_branch {end_label}")

def gen_chain_kernel(A, name):
    kernel_header(A, name)
    end = A.label("end")
    A.e("s_cmp_ge_u32 s2, 256", f"s_cbranch_scc1 {end}")
    A.e("s_load_dwordx4 s[44:47], s[0:1], 8", "s_load_dwordx4 s[48:51], s[0:1], 24", "s_load_dwordx2 s[52:53], s[0:1], 40", "s_load_dwordx4 s[4:7], s[0:1], 88")
    A.e("v_lshrrev_b32 v40, 6, v0", "s_nop 0", f"v_readfirstlane_b32 s{sW}, v40", "s_waitcnt lgkmcnt(0)")
    srd(A, SWS, sWSP, WS_BYTES); srd(A, SM0, 44, 8192); srd(A, SWQ, 46, 4 << 20); srd(A, SWK, 48, 4 << 20); srd(A, SWV, 50, 4 << 20); srd(A, SWO, 52, 4 << 20)
    A.e(f"s_mov_b32 s{sPOLL}, 0")
    election(A, end)
    lane_consts(A)
    slow = A.label("slowpath")
    A.e(f"s_cmp_eq_u32 s{sMODE}, 2", f"s_cbranch_scc1 {slow}")
    for sc, lab in (("", None), (" sc1", slow)):
        if lab: A.put(lab)
        init_buffers(A, sc)
        load_weights(A)
        step_loop(A, sc, end)
    A.put(end)
    A.e("s_endpgm")
```

```python
from asmlib import *
from layout import *
from sched import *
import chain as C1
from chain import (sDBG, sWSP, SWS, SWQ, SWK, SWV, SWO, SM0, sW, sH, sMODE, sS, sT0, sT1, sT2, sT3, sC, sPOLL, CTL_BAR,
                   election, retry, nop, mark, prof_init, prof_out, prof_step)

STOP_AFTER_A = False
LDSC = " sc1"
DROP = set()
sAGR, sAGW, sAGZ, sRSR, sRSR1, sRSZ = 36, 37, 38, 40, 41, 42
sKXS, sVXS, sKV, sM0KX = 43, 54, 55, 57
sKVp = 39
sRT = 12
vIDX, vLIN, vRSL, vRSS = 0, 1, 2, 3
vSEL, vSELQ = 4, 8
vAGW0, vAGW1, vAGRe, vAGRo = 12, 13, 14, 15
vQW, vQR0, vQR1, vOW = 16, 17, 18, 19
vKX = 20
vOR, vWO0, vWO1, vAGS = 24, 25, 26, 27
vVM0, vKP0, vVM1, vKP1, vPM = 28, 29, 30, 31, 32
vVXc, vVXn = 36, 44
vM = 52
vAQ, vAK, vAV = 84, 92, 100
vP = 108
WV0 = 128
OSTR = 288
WS = f"s[{SWS}:{SWS+3}]"

def wq(t, ks): return ar((t * 8 + ks) * 8, 8)
def wk(t, ks): return ar(128 + (t * 8 + ks) * 8, 8)
def wv(t, ks): return vr(WV0 + (t * 8 + ks) * 8, 8)

def lane_consts(A):
    A.c("---- per-lane constants; v40=l v41=i v42=g v43=half v44=tok v45=i&1")
    A.e("v_and_b32 v40, 63, v0", "v_and_b32 v41, 15, v0", "v_lshrrev_b32 v42, 4, v40")
    A.e("v_lshrrev_b32 v43, 1, v41", "v_and_b32 v43, 1, v43")
    A.e("v_lshrrev_b32 v44, 2, v41", "v_lshlrev_b32 v44, 1, v44", "v_and_b32 v45, 1, v41", "v_add_u32 v44, v44, v45")
    A.e(f"v_mov_b32 v{vIDX}, 0x4444", "v_mov_b32 v46, 0xeeee", "v_cmp_eq_u32 vcc, 1, v43", "s_nop 1", f"v_cndmask_b32 v{vIDX}, v{vIDX}, v46, vcc")
    A.e("v_mov_b32 v46, 0x3f80", "v_mov_b32 v47, 0x3f800000", "v_cmp_eq_u32 vcc, 1, v45", "s_nop 1", f"v_cndmask_b32 v{vSEL}, v46, v47, vcc")
    for k in range(1, 4): A.e(f"v_mov_b32 v{vSEL+k}, v{vSEL}")
    A.c("SELQ: row i picks register i&3 and token parity (i>>2)&1")
    A.e("v_lshrrev_b32 v48, 2, v41", "v_and_b32 v48, 1, v48", "v_cmp_eq_u32 vcc, 1, v48", "s_nop 1", "v_cndmask_b32 v48, v46, v47, vcc", "v_and_b32 v49, 3, v41")
    for q in range(4):
        A.e(f"v_cmp_eq_u32 vcc, {q}, v49", "s_nop 1", f"v_cndmask_b32 v{vSELQ+q}, 0, v48, vcc")
    A.e(f"s_lshl_b32 s{sT0}, s{sW}, 11", f"v_lshlrev_b32 v{vLIN}, 4, v40", f"v_add_u32 v{vLIN}, s{sT0}, v{vLIN}")
    A.c("RSL = (4g + (i>>2))*256 + (4w + (i&3))*16")
    if RSLAY == 0:
        A.e("v_lshrrev_b32 v46, 2, v41", "v_lshl_add_u32 v46, v42, 2, v46", "v_lshlrev_b32 v46, 8, v46", "v_lshl_add_u32 v46, v49, 4, v46",
            f"s_lshl_b32 s{sT0}, s{sW}, 6", f"v_add_u32 v{vRSL}, s{sT0}, v46")
    else:
        A.e("v_lshrrev_b32 v46, 2, v41", "v_lshl_add_u32 v46, v42, 2, v46", "v_lshlrev_b32 v46, 6, v46", "v_lshl_add_u32 v46, v49, 4, v46",
            f"s_lshl_b32 s{sT0}, s{sW}, 11", f"v_add_u32 v{vRSL}, s{sT0}, v46")
    A.c("RSS = w*65536 + g*8192 + h*256 + i*16")
    if RSLAY == 0:
        A.e(f"s_mul_i32 s{sT0}, s{sW}, {8*CS}", f"s_lshl_b32 s{sT1}, s{sH}, 8", f"s_add_u32 s{sT0}, s{sT0}, s{sT1}",
            f"v_mul_u32_u24 v46, {CS}, v42", "v_lshl_add_u32 v46, v41, 4, v46", f"v_add_u32 v{vRSS}, s{sT0}, v46")
    else:
        A.e(f"s_mul_i32 s{sT0}, s{sW}, {8*CS}", f"s_lshl_b32 s{sT1}, s{sH}, 6", f"s_add_u32 s{sT0}, s{sT0}, s{sT1}",
            f"v_mul_u32_u24 v46, {CS}, v42", "v_lshrrev_b32 v47, 2, v41", "v_lshl_add_u32 v46, v47, 11, v46", "v_lshl_add_u32 v46, v49, 4, v46", f"v_add_u32 v{vRSS}, s{sT0}, v46")
    A.c("AGS = (2(h&3) + g)*1024 + (h>>2)*128 + w*32 + (i&3)*8 for i<4 and g<2, else out of range")
    A.e(f"s_and_b32 s{sT0}, s{sH}, 3", f"s_lshl_b32 s{sT0}, s{sT0}, 11", f"s_lshr_b32 s{sT1}, s{sH}, 2", f"s_lshl_b32 s{sT1}, s{sT1}, 7", f"s_add_u32 s{sT0}, s{sT0}, s{sT1}",
        f"s_lshl_b32 s{sT1}, s{sW}, 5", f"s_add_u32 s{sT0}, s{sT0}, s{sT1}",
        "v_and_b32 v46, 1, v42", "v_lshlrev_b32 v46, 10, v46", "v_lshl_add_u32 v46, v49, 3, v46", f"v_add_u32 v50, s{sT0}, v46",
        "v_lshrrev_b32 v47, 1, v42", "v_lshrrev_b32 v48, 2, v41", "v_or_b32 v47, v47, v48", "v_mov_b32 v46, 0x70000000",
        "v_cmp_eq_u32 vcc, 0, v47", "s_nop 1", f"v_cndmask_b32 v{vAGS}, v46, v50, vcc")
    A.e(f"s_lshl_b32 s{sT0}, s{sW}, 1", f"s_and_b32 s{sT1}, s{sT0}, 3", f"s_lshl_b32 s{sT1}, s{sT1}, 2",
        )
    if ROT:
        A.e(f"s_and_b32 s{sT2}, s{sH}, 3", f"s_lshl_b32 s{sT2}, s{sT2}, 4", f"v_subrev_u32 v46, s{sT2}, v40", "v_and_b32 v46, 63, v46", f"v_xor_b32 v46, s{sT1}, v46")
    else:
        A.e(f"v_xor_b32 v46, s{sT1}, v40")
    A.e(f"v_lshlrev_b32 v{vAGW0}, 4, v46",
        f"s_lshl_b32 s{sT0}, s{sT0}, 10", f"s_add_u32 s{sT0}, s{sT0}, {L_MB}", f"v_add_u32 v{vAGW0}, s{sT0}, v{vAGW0}",
        f"v_xor_b32 v{vAGW1}, 64, v{vAGW0}", f"v_add_u32 v{vAGW1}, 1024, v{vAGW1}")
    A.e("v_lshlrev_b32 v46, 1, v42", "v_add_u32 v46, v46, v43",
        "v_and_b32 v47, 1, v44", "v_lshlrev_b32 v47, 2, v47", "v_xor_b32 v46, v46, v47", "v_lshlrev_b32 v46, 4, v46",
        "v_lshrrev_b32 v47, 1, v44", "v_and_b32 v47, 1, v47", "v_lshlrev_b32 v47, 7, v47",
        "v_lshlrev_b32 v48, 10, v44", "v_add_u32 v48, v48, v46", f"v_add_u32 v48, {L_MB}, v48",
        f"v_add_u32 v{vAGRe}, v48, v47", f"v_sub_u32 v{vAGRo}, v48, v47")
    A.e(f"v_mul_u32_u24 v46, {OSTR}, v44", f"v_add_u32 v46, {L_MB}, v46", f"v_lshl_add_u32 v{vOR}, v42, 4, v46",
        f"s_lshl_b32 s{sT0}, s{sW}, 6", f"v_lshl_add_u32 v46, v42, 3, v46", "v_lshl_add_u32 v46, v43, 2, v46", f"v_add_u32 v{vOW}, s{sT0}, v46")
    A.e(f"s_lshl_b32 s{sT0}, s{sW}, 10", "v_lshlrev_b32 v46, 5, v41", "v_lshrrev_b32 v47, 3, v41", "v_lshlrev_b32 v47, 7, v47", "v_xor_b32 v46, v46, v47",
        "v_lshrrev_b32 v47, 2, v41", "v_xor_b32 v47, v47, v42", "v_and_b32 v47, 3, v47",
        "v_lshl_add_u32 v46, v47, 3, v46", f"v_add_u32 v46, s{sT0}, v46", f"v_add_u32 v{vQW}, {L_Q}, v46")
    A.e("v_lshlrev_b32 v46, 8, v42", "v_lshrrev_b32 v47, 2, v41", "v_lshl_add_u32 v46, v47, 5, v46",
        "v_and_b32 v47, 1, v42", "v_lshl_add_u32 v46, v47, 7, v46",
        "v_lshlrev_b32 v47, 1, v42", "v_and_b32 v47, 3, v47", "v_and_b32 v48, 3, v41", "v_xor_b32 v47, v47, v48", "v_lshl_add_u32 v46, v47, 3, v46",
        f"v_add_u32 v{vQR0}, {L_Q}, v46", f"v_xor_b32 v{vQR1}, 136, v{vQR0}")
    for ks in range(4):
        A.e(f"v_or_b32 v46, {4*ks}, v42", "v_xor_b32 v46, v46, v41", "v_lshlrev_b32 v46, 4, v46", "v_lshl_add_u32 v46, v41, 8, v46", f"v_add_u32 v{vKX+ks}, {L_KX}, v46")
    A.e(f"s_lshl_b32 s{sT0}, s{sW}, 14", f"v_lshlrev_b32 v{vWO0}, 4, v40", f"v_add_u32 v{vWO0}, s{sT0}, v{vWO0}", f"v_add_u32 v{vWO1}, 0x10000, v{vWO0}")
    for r in range(vVM0, vPM + 4): A.e(f"v_mov_b32 v{r}, 0")
    A.e(f"s_mov_b32 s{sC}, 0x3e0293ee")
    A.e(f"v_cmp_eq_u32 s[{sHALF}:{sHALF+1}], 0, v43")

def init_issue(A, sc):
    A.c("---- sentinel init of this head's receive areas; m_0 is fetched from mem0 (column-position order)")
    A.e("v_mov_b32 v52, -1", "v_mov_b32 v53, -1", "v_mov_b32 v54, -1", "v_mov_b32 v55, -1")
    A.e(f"s_mul_i32 s{sT0}, s{sH}, {CS}", f"s_add_u32 s{sT0}, s{sT0}, {RS:#x}", f"s_add_u32 s{sT1}, s{sT0}, {SLOT:#x}")
    for so in ((sT0,) if RSTAG else (sT0, sT1)):
        A.e(f"buffer_store_dwordx4 v[52:55], v{vLIN}, {WS}, s{so} offen{sc}", f"buffer_store_dwordx4 v[52:55], v{vLIN}, {WS}, s{so} offen offset:1024{sc}")
    for r in (1, 2):
        A.e(f"s_mov_b32 s{sT0}, {AG + r*8192:#x}", f"buffer_store_dwordx2 v[52:53], v{vAGS}, {WS}, s{sT0} offen{sc}")
    A.e(f"s_and_b32 s{sT0}, s{sH}, 3", f"s_lshl_b32 s{sT0}, s{sT0}, 11", f"s_lshr_b32 s{sT1}, s{sH}, 2", f"s_lshl_b32 s{sT1}, s{sT1}, 7", f"s_add_u32 s{sT0}, s{sT0}, s{sT1}",
        f"s_lshl_b32 s{sT1}, s{sW}, 3", f"s_add_u32 s{sT0}, s{sT0}, s{sT1}",
        "v_and_b32 v56, 1, v42", "v_lshlrev_b32 v56, 10, v56", "v_and_b32 v57, 3, v41", "v_lshl_add_u32 v56, v57, 1, v56", f"v_add_u32 v60, s{sT0}, v56")
    for q in range(4): A.e(f"buffer_load_ushort v{56+q}, v60, s[{SM0}:{SM0+3}], 0 offen offset:{32*q}")
    if TAILFLAG:
        A.e(f"s_lshl_b32 s{sFLO}, s{sH}, 2", f"s_or_b32 s{sFLO}, s{sFLO}, s{sW}", f"s_mov_b32 s{sT0}, {FLG:#x}", f"s_cmp_eq_u32 s{sFLO}, 0", f"s_cselect_b32 s{sFLO}, s{sT0}, 0x70000000",
            "v_mov_b32 v61, 0", f"buffer_store_dword v61, off, {WS}, s{sFLO} sc1")
        if FINLINE is not None:
            A.e(f"s_lshl_b32 s{sFIN}, s{sH}, 2", f"s_add_u32 s{sFIN}, s{sFIN}, {FLG + FINLINE*128:#x}", f"s_cmp_eq_u32 s{sW}, 0", f"s_cselect_b32 s{sFIN}, s{sFIN}, 0x70000000",
                f"buffer_store_dword v61, off, {WS}, s{sFIN} sc1")

def init_m0(A, sc, younger):
    A.e(f"s_waitcnt vmcnt({younger})", "v_lshl_or_b32 v56, v57, 16, v56", "v_lshl_or_b32 v57, v59, 16, v58", "v_min_u32 v56, -2, v56", "v_min_u32 v57, -2, v57",
        f"s_mov_b32 s{sT0}, {AG:#x}", f"buffer_store_dwordx2 v[56:57], v{vAGS}, {WS}, s{sT0} offen{sc}")

def init_arrive(A):
    skip = A.label("arrive_skip")
    A.e(f"s_cmp_lg_u32 s{sW}, 0", f"s_cbranch_scc1 {skip}", "s_mov_b64 exec, 1", "v_mov_b32 v62, 0", "v_mov_b32 v63, 1",
        f"global_atomic_add v62, v63, s[{sDBG}:{sDBG+1}] offset:{CTL_BAR}")
    if TAILFLAG: A.e(f"global_atomic_add v62, v63, s[{sDBG}:{sDBG+1}] offset:{D_INIT}")
    A.e("s_mov_b64 exec, -1")
    A.put(skip)

def dma_consts(A):
    A.e("v_lshlrev_b32 v46, 13, v42", "v_lshl_add_u32 v46, v41, 4, v46")
    A.e("v_lshrrev_b32 v47, 5, v40", "v_lshlrev_b32 v47, 10, v47", "v_and_b32 v48, 31, v40", "v_lshl_add_u32 v47, v48, 4, v47")

ARRIVE2, D_W2 = 9, 0
WNT = ''
def slot(c): return ((c + 3) % 5) * 32768
ROT = False
ILV = False
def issue_chunk(A, c):
    top = A.label("wdma")
    sh = 15 if ILV else 18
    if c < 12:
        s_ = (SWQ, SWK, SWV)[c // 4]; cc = c % 4; v = 46; step = 0x8000 * (4 if ILV else 1)
        A.e(f"s_lshl_b32 s{sT0}, s{sW}, {15 if ILV else 18}", f"s_lshl_b32 s{sT1}, s{sH}, 8", f"s_add_u32 s{sT0}, s{sT0}, s{sT1}")
        if ROT:
            A.e(f"s_add_u32 s{sT1}, s{sH}, {cc}", f"s_and_b32 s{sT1}, s{sT1}, 3", f"s_lshl_b32 s{sT1}, s{sT1}, 20", f"s_add_u32 s{sT0}, s{sT0}, s{sT1}")
        elif cc: A.e(f"s_add_u32 s{sT0}, s{sT0}, {128*cc*8192:#x}")
    else:
        cc = c - 12; ksp = cc >> 1; cp = cc & 1; s_ = SWO; v = 47; step = 0x800 * (4 if ILV else 1)
        A.e(f"s_lshl_b32 s{sT0}, s{sW}, {11 if ILV else 14}", f"s_lshl_b32 s{sT1}, s{sH}, 17", f"s_add_u32 s{sT0}, s{sT0}, s{sT1}", f"s_add_u32 s{sT0}, s{sT0}, {64*ksp*1024 + cp*512:#x}")
    A.e(f"s_lshl_b32 s{sT1}, s{sW}, {10 if ILV else 13}", f"s_add_u32 s{sT1}, s{sT1}, {slot(c)}", f"s_add_u32 s{sT2}, s{sT1}, {32768 if ILV else 8192}")
    A.put(top)
    A.e(f"s_mov_b32 m0, s{sT1}", f"s_add_u32 s{sT1}, s{sT1}, {4096 if ILV else 1024}", f"buffer_load_dwordx4 v{v}, s[{s_}:{s_+3}], s{sT0} offen{WNT} lds",
        f"s_add_u32 s{sT0}, s{sT0}, {step:#x}", f"s_cmp_lt_u32 s{sT1}, s{sT2}", f"s_cbranch_scc1 {top}")

def load_weights(A, sc, hook13=None, hook15=None):
    A.c("---- weights: 16 chunks of 32 KiB through a 5-slot LDS ring (chunks 0..3 were issued at entry)")
    A.e("v_lshrrev_b32 v50, 2, v41", "v_and_b32 v51, 1, v50", "v_lshlrev_b32 v51, 4, v51", "v_lshrrev_b32 v50, 1, v50", "v_lshl_add_u32 v50, v50, 1, v51",
        "v_lshrrev_b32 v51, 1, v42", "v_lshl_add_u32 v50, v51, 2, v50", "v_and_b32 v51, 1, v42", "v_add_u32 v50, v50, v51",
        "v_and_b32 v51, 3, v41", "v_lshlrev_b32 v51, 3, v51",
        "v_lshl_add_u32 v48, v50, 8, v51", f"s_lshl_b32 s{sT0}, s{sW}, 6", f"v_add_u32 v48, s{sT0}, v48")
    A.e("v_lshrrev_b32 v49, 1, v42", "v_lshlrev_b32 v49, 3, v49", "v_and_b32 v50, 1, v42", "v_lshl_add_u32 v49, v50, 2, v49", "v_lshrrev_b32 v50, 2, v41", "v_add_u32 v49, v49, v50",
        "v_lshl_add_u32 v49, v49, 9, v51", f"s_lshl_b32 s{sT0}, s{sW}, 7", f"v_add_u32 v49, s{sT0}, v49",
        f"s_lshl_b32 s{sT0}, s{sW}, 13", "v_lshlrev_b32 v50, 4, v40", f"v_add_u32 v50, s{sT0}, v50")
    init_m0(A, sc, 32)
    for c in range(16):
        A.e(f"s_waitcnt vmcnt({8 * (min(c + 3, 15) - c)})", "s_barrier")
        if c + 4 < 16: issue_chunk(A, c + 4)
        if c == 13 and hook13: hook13()
        if c == 15 and hook15: hook15()
        if c == 5: init_arrive(A)
        if c == ARRIVE2 and D_W2:
            sk = A.label("w2")
            A.e(f"s_cmp_lg_u32 s{sW}, 0", f"s_cbranch_scc1 {sk}", "s_mov_b64 exec, 1", "v_mov_b32 v62, 0", "v_mov_b32 v63, 1", f"global_atomic_add v62, v63, s[{sDBG}:{sDBG+1}] offset:{D_W2}", "s_mov_b64 exec, -1")
            A.put(sk)
        if c < 12:
            cc = c % 4
            A.e(f"v_add_u32 v51, {slot(c)}, v48")
            for kk in range(2):
                ks = 2 * cc + kk
                for t in range(2):
                    for j in range(4):
                        off = (64 * kk + 32 * (j & 1) + 8 * (j >> 1)) * 256 + t * 32
                        base = (t * 8 + ks) * 8 + 2 * j
                        dst = ar(base, 2) if c < 4 else ar(128 + base, 2) if c < 8 else vr(WV0 + base, 2)
                        A.e(f"ds_read_b64_tr_b16 {dst}, v51 offset:{off}")
            A.e("s_waitcnt lgkmcnt(0)")
        else:
            A.e(f"v_add_u32 v51, {slot(c)}, v49")
            for fl in range(4):
                for u in range(2):
                    for tp in range(2):
                        off = (fl >> 1) * 64 + (fl & 1) * 16384 + u * 8192 + tp * 32
                        A.e(f"ds_read_b64_tr_b16 {vr(64 + fl * 8 + u * 4 + tp * 2, 2)}, v51 offset:{off}")
            A.e("s_waitcnt lgkmcnt(0)", "s_barrier", f"v_add_u32 v51, {slot(c)}, v50")
            for fl in range(4):
                for u in range(2):
                    b = 64 + fl * 8 + u * 4
                    A.e(f"v_mov_b32 v96, v{b+1}", f"v_mov_b32 v{b+1}, v{b+2}", f"v_mov_b32 v{b+2}, v96")
                    A.e(f"ds_write_b128 v51, {vr(b, 4)} offset:{fl * 2048 + u * 1024}")
            A.e("s_waitcnt lgkmcnt(0)")
    A.e("s_barrier")

def chain_prologue(A, sc_paths, end, verbose):
    A.e("v_and_b32 v40, 63, v0", "v_and_b32 v41, 15, v0", "v_lshrrev_b32 v42, 4, v40")
    dma_consts(A)

SLOT8 = False
sMSK = 20
def sel_masks(A):
    if not SLOT8: return
    A.e("v_mbcnt_lo_u32_b32 v52, -1, 0", "v_mbcnt_hi_u32_b32 v52, -1, v52", "v_and_b32 v53, 1, v52", f"v_cmp_eq_u32 s[{sMSK}:{sMSK+1}], 1, v53",
        "v_lshrrev_b32 v53, 2, v52", "v_and_b32 v53, 1, v53", f"v_cmp_eq_u32 s[{sMSK+2}:{sMSK+3}], 1, v53", "v_and_b32 v53, 3, v52")
    for q in range(4): A.e(f"v_cmp_eq_u32 s[{sMSK+4+2*q}:{sMSK+5+2*q}], {q}, v53")
    A.e("s_nop 2")
def sel_rebuild(A, t):
    if not SLOT8: return
    A.e(f"v_mov_b32 v{t}, 0x3f80", f"v_mov_b32 v{t+1}, 0x3f800000", f"v_cndmask_b32 v{vSEL}, v{t}, v{t+1}, s[{sMSK}:{sMSK+1}]", f"v_cndmask_b32 v{t}, v{t}, v{t+1}, s[{sMSK+2}:{sMSK+3}]")
    for k in range(1, 4): A.e(f"v_mov_b32 v{vSEL+k}, v{vSEL}")
    for q in range(4): A.e(f"v_cndmask_b32 v{vSELQ+q}, 0, v{t}, s[{sMSK+4+2*q}:{sMSK+5+2*q}]")

def m_reads(p):
    for ks in range(8):
        ad = vAGRe if ks % 2 == 0 else vAGRo
        p.append(DSR(f"ds_read_b128 {vr(vM+4*ks,4)}, v{ad} offset:{ks*128}", [vr(vM+4*ks,4)], [f"v{ad}"]))

def smf(acc, ks, b):
    return SMF(f"v_smfmac_f32_16x16x64_bf16 {vr(acc,4)}, {vr(vM+4*ks,4)}, {b}, v{vIDX}", [vr(acc,4)], [vr(acc,4), vr(vM+4*ks,4), f"v{vIDX}"])

def publish(p, so, tag=None):
    p.append(VMS(f"buffer_store_dwordx4 {vr(vVM0,4)}, v{vLIN}, {WS}, s{so} offen sc1", [vr(vVM0,4), f"v{vLIN}", f"s{so}"], tag=tag))

def side_traffic(p, sc):
    P = vP
    if "pre" not in DROP:
        p.append(DMA(f"buffer_load_dwordx4 v{vLIN}, {WS}, s{sKXS} offen{LDSC} lds", [f"v{vLIN}", f"s{sKXS}", "m0"], tag="afterbar"))
        p.append(DMA(f"buffer_load_dwordx4 v{vLIN}, {WS}, s{sKXS} offen offset:1024{LDSC} lds", [f"v{vLIN}", f"s{sKXS}", "m0"], tag="afterbar"))
        p.append(VML(f"buffer_load_dwordx4 {vr(vVXn,4)}, v{vLIN}, {WS}, s{sVXS} offen{LDSC}", [vr(vVXn,4)], [f"v{vLIN}", f"s{sVXS}"], tag="afterbar"))
        p.append(VML(f"buffer_load_dwordx4 {vr(vVXn+4,4)}, v{vLIN}, {WS}, s{sVXS} offen offset:1024{LDSC}", [vr(vVXn+4,4)], [f"v{vLIN}", f"s{sVXS}"], tag="afterbar"))
    if TAILFLAG:
        p.append(V(f"v_mov_b32 v{P+9}, s{sFLV}", [f"v{P+9}"], []))
        p.append(VMS(f"buffer_store_dword v{P+9}, off, {WS}, s{sFLO} sc1", [f"v{P+9}", f"s{sFLO}"], tag="afterbar"))

KPRIO = 0
KXEARLY = 2
def post_halves(p, acc, prio=0):
    p.append(V(f"v_add_f32 v{acc}, v{acc}, v{acc+2}", [f"v{acc}"], [f"v{acc}", f"v{acc+2}"], prio))
    p.append(V(f"v_add_f32 v{acc+1}, v{acc+1}, v{acc+3}", [f"v{acc+1}"], [f"v{acc+1}", f"v{acc+3}"], prio))

def cvt(p, d, a, b, prio=0):
    p.append(V(f"v_cvt_pk_bf16_f32 v{d}, v{a}, v{b}", [f"v{d}"], [f"v{a}", f"v{b}"], prio))

def MK(p, k):
    if C1.PROF and (C1.MARKS is None or k in C1.MARKS):
        i = I(f"s_memtime s[{C1.sTM+2*k}:{C1.sTM+2*k+1}]", "mfma", (), ())
        i.tag = "mark"
        p.append(i)

def region_a(sc):
    P = vP
    p = [BAR()]
    m_reads(p)
    side_traffic(p, sc)
    for ks in range(8):
        for t in range(2): p.append(smf(vAQ + 4 * t, ks, wq(t, ks)))
    MK(p, 1)
    if NSET > 1 or AG2:
        p.append(I("WAITVM", "mfma", [vr(P, 8)], [], tag="mark"))
    for t in range(2):
        for ks in range(8): p.append(smf(vAK + 4 * t, ks, wk(t, ks)))
    MK(p, 2)
    for ks in range(8):
        for t in range(2): p.append(smf(vAV + 4 * t, ks, wv(t, ks)))
    for t in range(2):
        post_halves(p, vAQ + 4 * t); cvt(p, P + 14 + t, vAQ + 4 * t, vAQ + 4 * t + 1)
        p.append(DSW(f"ds_write2_b32 v{vQW}, v{P+14+t}, v{P+14+t} offset0:{t*128} offset1:{t*128+1}", [f"v{vQW}", f"v{P+14+t}"]))
    for t, kp in ((0, vKP0), (1, vKP1)):
        post_halves(p, vAK + 4 * t, KPRIO); cvt(p, kp, vAK + 4 * t, vAK + 4 * t + 1, KPRIO)
        p.append(DSW(f"ds_write_b32 v{vQW}, v{kp} offset:{4096+t*512}", [f"v{vQW}", f"v{kp}"], prio=KPRIO))
    G = [dict(KX0=P, KX1=P + 4, Q=P + 8, KM=P + 12),
         dict(Q=vAK, KM=vAK + 4, KX0=vM, KX1=vM + 4),
         dict(KX0=vM + 8, KX1=vM + 12, Q=vM + 16, KM=vM + 20),
         dict(Q=vM + 24, KM=vM + 28, KX0=P, KX1=P + 4)]
    def kx(ks):
        for T in range(2):
            d = G[ks][f"KX{T}"]
            p.append(DSR(f"ds_read_b128 {vr(d,4)}, v{vKX+ks} offset:{T*4096}", [vr(d,4)], [f"v{vKX+ks}"]))
    kx(0)
    if KXEARLY >= 1: kx(1)
    if KXEARLY >= 2: kx(2)
    p.append(BAR())
    def qk(ks):
        for name, o in (("Q", 0), ("KM", 4096)):
            d = G[ks][name]
            p.append(DSR(f"ds_read_b64_tr_b16 {vr(d,2)}, v{vQR0} offset:{o+ks*1024}", [vr(d,2)], [f"v{vQR0}"]))
            p.append(DSR(f"ds_read_b64_tr_b16 {vr(d+2,2)}, v{vQR1} offset:{o+ks*1024}", [vr(d+2,2)], [f"v{vQR1}"]))
    qk(0); qk(1)
    if KXEARLY < 1: kx(1)
    qk(2)
    if KXEARLY < 2: kx(2)
    qk(3)
    for t, vm in ((0, vVM0), (1, vVM1)):
        post_halves(p, vAV + 4 * t); cvt(p, vm, vAV + 4 * t, vAV + 4 * t + 1)
    if "pub" not in DROP: publish(p, sKV)
    SA = [vAQ, vAQ + 4, P + 16]
    MK(p, 3)
    for ks in range(4):
        g = G[ks]
        for T, a in ((0, g["KX0"]), (1, g["KX1"]), (2, g["KM"])):
            c = "0" if ks == 0 else vr(SA[T], 4)
            p.append(MFMA(f"v_mfma_f32_16x16x32_bf16 {vr(SA[T],4)}, {vr(a,4)}, {vr(g['Q'],4)}, {c}", [vr(SA[T],4)],
                          [vr(a,4), vr(g['Q'],4)] + ([] if ks == 0 else [vr(SA[T],4)]), first=(ks == 0)))
        if ks == 0: kx(3)
    for ks in range(4):
        p.append(V(f"v_xor_b32 v{vKX+ks}, 0x2000, v{vKX+ks}", [f"v{vKX+ks}"], [f"v{vKX+ks}"], prio=-50))
    FS = [vM, vM + 8, vM + 16, vM + 24, vAK, P, P + 8] + ([vSEL] if SLOT8 else [])
    NF = len(FS)
    def frag(f):
        j, kap = f >> 2, f & 3
        wo = vWO0 if kap < 2 else vWO1
        d = FS[f % NF]
        o = j * 4096 + (kap & 1) * 2048
        p.append(DSR(f"ds_read_b128 {vr(d,4)}, v{wo} offset:{o}", [vr(d,4)], [f"v{wo}"]))
        p.append(DSR(f"ds_read_b128 {vr(d+4,4)}, v{wo} offset:{o+1024}", [vr(d+4,4)], [f"v{wo}"]))
    for f in range(7): frag(f)
    s = [vAQ + k for k in range(8)] + [P + 16, P + 17]
    T0, T1 = vAV + 4, vAV + 5
    p.append(V(f"v_max3_f32 v{T0}, v{s[0]}, v{s[1]}, v{s[2]}", [f"v{T0}"], [f"v{x}" for x in s[0:3]]))
    p.append(V(f"v_max3_f32 v{T1}, v{s[3]}, v{s[4]}, v{s[5]}", [f"v{T1}"], [f"v{x}" for x in s[3:6]]))
    p.append(V(f"v_max3_f32 v{T0}, v{T0}, v{s[6]}, v{s[7]}", [f"v{T0}"], [f"v{T0}", f"v{s[6]}", f"v{s[7]}"]))
    p.append(V(f"v_max3_f32 v{T1}, v{T1}, v{s[8]}, v{s[9]}", [f"v{T1}"], [f"v{T1}", f"v{s[8]}", f"v{s[9]}"]))
    p.append(V(f"v_max_f32 v{T0}, v{T0}, v{T1}", [f"v{T0}"], [f"v{T0}", f"v{T1}"]))
    for sw in ("v_permlane16_swap_b32", "v_permlane32_swap_b32"):
        p.append(V(f"v_mov_b32 v{T1}, v{T0}", [f"v{T1}"], [f"v{T0}"]))
        p.append(PERM(f"{sw} v{T0}, v{T1}", [f"v{T0}", f"v{T1}"], [f"v{T0}", f"v{T1}"]))
        p.append(V(f"v_max_f32 v{T0}, v{T0}, v{T1}", [f"v{T0}"], [f"v{T0}", f"v{T1}"]))
    p.append(V(f"v_mul_f32 v{T0}, s{sC}, v{T0}", [f"v{T0}"], [f"v{T0}"]))
    for x in s:
        p.append(V(f"v_fma_f32 v{x}, v{x}, s{sC}, -v{T0}", [f"v{x}"], [f"v{x}", f"v{T0}"]))
        p.append(TRN(f"v_exp_f32 v{x}, v{x}", [f"v{x}"], [f"v{x}"]))
    PX = vAV
    for k in range(4): cvt(p, PX + k, s[2 * k], s[2 * k + 1])
    cvt(p, vPM, s[8], s[9])
    OA, LA = vAQ, P + 16
    MK(p, 4)
    p.append(MFMA(f"v_mfma_f32_16x16x32_bf16 {vr(LA,4)}, {vr(vSEL,4)}, {vr(PX,4)}, 0", [vr(LA,4)], [vr(vSEL,4), vr(PX,4)], first=True))
    for t in range(2):
        p.append(MFMA(f"v_mfma_f32_16x16x32_bf16 {vr(OA+4*t,4)}, {vr(vVXc+4*t,4)}, {vr(PX,4)}, 0", [vr(OA+4*t,4)], [vr(vVXc+4*t,4), vr(PX,4)], first=True))
    p.append(MFMA(f"v_mfma_f32_16x16x32_bf16 {vr(LA,4)}, {vr(vSEL,4)}, {vr(vPM,4)}, {vr(LA,4)}", [vr(LA,4)], [vr(vSEL,4), vr(vPM,4), vr(LA,4)]))
    for t, vm in ((0, vVM0), (1, vVM1)):
        p.append(MFMA(f"v_mfma_f32_16x16x32_bf16 {vr(OA+4*t,4)}, {vr(vm,4)}, {vr(vPM,4)}, {vr(OA+4*t,4)}", [vr(OA+4*t,4)], [vr(vm,4), vr(vPM,4), vr(OA+4*t,4)]))
    p.append(V(f"v_cmp_eq_u32 vcc, 0x4444, v{vIDX}", ["vcc"], [f"v{vIDX}"]))
    p.append(V(f"v_add_f32 v{LA}, v{LA}, v{LA+1}", [f"v{LA}"], [f"v{LA}", f"v{LA+1}"]))
    p.append(TRN(f"v_rcp_f32 v{LA}, v{LA}", [f"v{LA}"], [f"v{LA}"]))
    for t in range(2):
        r = OA + 4 * t
        p.append(V(f"v_cndmask_b32 v{r}, v{r+2}, v{r}, vcc", [f"v{r}"], [f"v{r}", f"v{r+2}", "vcc"]))
        p.append(V(f"v_cndmask_b32 v{r+1}, v{r+3}, v{r+1}, vcc", [f"v{r+1}"], [f"v{r+1}", f"v{r+3}", "vcc"]))
        p.append(V(f"v_mul_f32 v{r}, v{r}, v{LA}", [f"v{r}"], [f"v{r}", f"v{LA}"]))
        p.append(V(f"v_mul_f32 v{r+1}, v{r+1}, v{LA}", [f"v{r+1}"], [f"v{r+1}", f"v{LA}"]))
        cvt(p, r, r, r + 1)
        p.append(DSW(f"ds_write_b32 v{vOW}, v{r} offset:{t*32}", [f"v{vOW}", f"v{r}"]))
    ACC = [P + 16, vAQ + 4]
    OUT = [vAQ, vAV]
    if SLOT8: frag(7)
    p.append(BAR())
    OO = [vVXc, vVXc + 4, vAK, vAK + 4]
    return p, FS, NF, frag, ACC, OUT, OO

def region_a_full(sc):
    P = vP
    p, FS, NF, frag, ACC, OUT, OO = region_a(sc)
    OO = [vVXc, vVXc + 4, vAV, vAV + 4]
    OUT = [vAQ, vAQ]
    for kap in range(4):
        p.append(DSR(f"ds_read_b128 {vr(OO[kap],4)}, v{vOR} offset:{kap*64}", [vr(OO[kap],4)], [f"v{vOR}"]))
    nxt = NF
    MK(p, 5)
    for j in range(4):
        a = ACC[j % 2]
        p.append(V(f"v_mov_b64 {vr(a,2)}, 0", [vr(a,2)], []))
        p.append(V(f"v_mov_b64 {vr(a+2,2)}, 0", [vr(a+2,2)], []))
        for kap in range(4):
            f = 4 * j + kap; d = FS[f % NF]
            p.append(SMF(f"v_smfmac_f32_16x16x64_bf16 {vr(a,4)}, {vr(OO[kap],4)}, {vr(d,8)}, v{vIDX}", [vr(a,4)], [vr(a,4), vr(OO[kap],4), vr(d,8), f"v{vIDX}"]))
            if nxt < 16: frag(nxt); nxt += 1
        o = OUT[j >> 1]
        for tp in range(2):
            cvt(p, o + 2 * (j & 1) + tp, a + 2 * tp, a + 2 * tp + 1)
        cg = j >> 1
        if RSX2 and "rss" not in DROP:
            d = o + 2 * (j & 1)
            p.append(V(f"v_and_or_b32 v{d}, v{d}, -2, s{sTAG}", [f"v{d}"], [f"v{d}"], RSPRIO))
            p.append(VMS(f"buffer_store_dwordx2 {vr(d,2)}, v{vRSS}, {WS}, s{sRT+cg} offen offset:{8*(j&1)}{sc}", [vr(d,2), f"v{vRSS}", f"s{sRT+cg}"], prio=RSPRIO))
        elif j & 1 and "rss" not in DROP:
            if RSTAG: p.append(V(f"v_and_or_b32 v{o}, v{o}, -2, s{sTAG}", [f"v{o}"], [f"v{o}"]))
            p.append(VMS(f"buffer_store_dwordx4 {vr(o,4)}, v{vRSS}, {WS}, s{sRT+cg} offen{sc}", [vr(o,4), f"v{vRSS}", f"s{sRT+cg}"], prio=RSPRIO))
    return p

EARLYX = False
sHALF = 100
FIXES = []
def region_b(sc):
    P = vP
    Mk = lambda ks: vM + 4 * ks
    p = [BAR()]
    m_reads(p)
    if "pre" not in DROP:
        p.append(DMA(f"buffer_load_dwordx4 v{vLIN}, {WS}, s{sKXS} offen{LDSC} lds", [f"v{vLIN}", f"s{sKXS}", "m0"], tag="afterbar"))
        p.append(DMA(f"buffer_load_dwordx4 v{vLIN}, {WS}, s{sKXS} offen offset:1024{LDSC} lds", [f"v{vLIN}", f"s{sKXS}", "m0"], tag="afterbar"))
    if TAILFLAG:
        p.append(V(f"v_mov_b32 v{P+17}, s{sFLV}", [f"v{P+17}"], []))
        p.append(VMS(f"buffer_store_dword v{P+17}, off, {WS}, s{sFLO} sc1", [f"v{P+17}", f"s{sFLO}"], tag="afterbar"))
    for ks in range(8):
        for t in range(2): p.append(smf(vAQ + 4 * t, ks, wq(t, ks)))
    MK(p, 1)
    for t in range(2):
        post_halves(p, vAQ + 4 * t); cvt(p, P + 18 + t, vAQ + 4 * t, vAQ + 4 * t + 1)
        p.append(DSW(f"ds_write2_b32 v{vQW}, v{P+18+t}, v{P+18+t} offset0:{t*128} offset1:{t*128+1}", [f"v{vQW}", f"v{P+18+t}"]))
    p.append(BAR())
    for t in range(2):
        for ks in range(8): p.append(smf(vAK + 4 * t, ks, wk(t, ks)))
    MK(p, 2)
    QO = [P + 4 * ks for ks in range(4)]
    slot = [vAV, vVXn]
    SA = [vAQ, vAQ + 4, P + 16]
    def qread(ks):
        p.append(DSR(f"ds_read_b64_tr_b16 {vr(QO[ks],2)}, v{vQR0} offset:{ks*1024}", [vr(QO[ks],2)], [f"v{vQR0}"]))
        p.append(DSR(f"ds_read_b64_tr_b16 {vr(QO[ks]+2,2)}, v{vQR1} offset:{ks*1024}", [vr(QO[ks]+2,2)], [f"v{vQR1}"]))
    def kx(ks):
        for T in range(2):
            d = slot[ks & 1] + 4 * T
            p.append(DSR(f"ds_read_b128 {vr(d,4)}, v{vKX+ks} offset:{T*4096}", [vr(d,4)], [f"v{vKX+ks}"]))
    def sx(ks):
        for T in range(2):
            a = slot[ks & 1] + 4 * T; c = "0" if ks == 0 else vr(SA[T], 4)
            p.append(MFMA(f"v_mfma_f32_16x16x32_bf16 {vr(SA[T],4)}, {vr(a,4)}, {vr(QO[ks],4)}, {c}", [vr(SA[T],4)],
                          [vr(a,4), vr(QO[ks],4)] + ([] if ks == 0 else [vr(SA[T],4)]), first=(ks == 0)))
    qread(0); kx(0); qread(1); kx(1); qread(2); qread(3)
    post_halves(p, vAK); cvt(p, vKP0, vAK, vAK + 1)
    p.append(DSW(f"ds_write_b32 v{vQW}, v{vKP0} offset:4096", [f"v{vQW}", f"v{vKP0}"]))
    sx(0); kx(2); sx(1); kx(3)
    post_halves(p, vAK + 4, KPRIO); cvt(p, vKP1, vAK + 4, vAK + 5, KPRIO)
    p.append(DSW(f"ds_write_b32 v{vQW}, v{vKP1} offset:4608", [f"v{vQW}", f"v{vKP1}"], prio=KPRIO))
    p.append(BAR())
    sx(2); sx(3)
    if "pre" not in DROP:
        p.append(VML(f"buffer_load_dwordx4 {vr(vVXn,4)}, v{vLIN}, {WS}, s{sVXS} offen{LDSC}", [vr(vVXn,4)], [f"v{vLIN}", f"s{sVXS}"], prio=2000))
        p.append(VML(f"buffer_load_dwordx4 {vr(vVXn+4,4)}, v{vLIN}, {WS}, s{sVXS} offen offset:1024{LDSC}", [vr(vVXn+4,4)], [f"v{vLIN}", f"s{sVXS}"], prio=2000))
    for ks in range(4):
        p.append(V(f"v_xor_b32 v{vKX+ks}, 0x2000, v{vKX+ks}", [f"v{vKX+ks}"], [f"v{vKX+ks}"], prio=-50))
    for k in range(0, 8, 2): p.append(V(f"v_mov_b64 {vr(vAV+k,2)}, 0", [vr(vAV+k,2)], []))
    KMO = [vAK, vAK + 4, Mk(0), Mk(1)]
    def kmread(ks):
        p.append(DSR(f"ds_read_b64_tr_b16 {vr(KMO[ks],2)}, v{vQR0} offset:{4096+ks*1024}", [vr(KMO[ks],2)], [f"v{vQR0}"]))
        p.append(DSR(f"ds_read_b64_tr_b16 {vr(KMO[ks]+2,2)}, v{vQR1} offset:{4096+ks*1024}", [vr(KMO[ks]+2,2)], [f"v{vQR1}"]))
    kmread(0); kmread(1)
    for ks in range(NV1):
        for t in range(2): p.append(smf(vAV + 4 * t, ks, wv(t, ks)))
    kmread(2); kmread(3)
    MK(p, 3)
    for ks in range(4):
        c = "0" if ks == 0 else vr(SA[2], 4)
        p.append(MFMA(f"v_mfma_f32_16x16x32_bf16 {vr(SA[2],4)}, {vr(KMO[ks],4)}, {vr(QO[ks],4)}, {c}", [vr(SA[2],4)],
                      [vr(KMO[ks],4), vr(QO[ks],4)] + ([] if ks == 0 else [vr(SA[2],4)]), first=(ks == 0)))
    for ks in range(NV1, 8):
        for t in range(2): p.append(smf(vAV + 4 * t, ks, wv(t, ks)))
    s_ = [vAQ + k for k in range(8)]
    T0, T1 = vPM, vVM1
    p.append(V(f"v_max3_f32 v{T0}, v{s_[0]}, v{s_[1]}, v{s_[2]}", [f"v{T0}"], [f"v{x}" for x in s_[0:3]]))
    p.append(V(f"v_max3_f32 v{T1}, v{s_[3]}, v{s_[4]}, v{s_[5]}", [f"v{T1}"], [f"v{x}" for x in s_[3:6]]))
    p.append(V(f"v_max3_f32 v{T0}, v{T0}, v{s_[6]}, v{s_[7]}", [f"v{T0}"], [f"v{T0}", f"v{s_[6]}", f"v{s_[7]}"]))
    p.append(V(f"v_max_f32 v{T0}, v{T0}, v{T1}", [f"v{T0}"], [f"v{T0}", f"v{T1}"]))
    for sw in ("v_permlane16_swap_b32", "v_permlane32_swap_b32"):
        p.append(V(f"v_mov_b32 v{T1}, v{T0}", [f"v{T1}"], [f"v{T0}"]))
        p.append(PERM(f"{sw} v{T0}, v{T1}", [f"v{T0}", f"v{T1}"], [f"v{T0}", f"v{T1}"]))
        p.append(V(f"v_max_f32 v{T0}, v{T0}, v{T1}", [f"v{T0}"], [f"v{T0}", f"v{T1}"]))
    p.append(V(f"v_mul_f32 v{T0}, s{sC}, v{T0}", [f"v{T0}"], [f"v{T0}"]))
    for x in s_:
        p.append(V(f"v_fma_f32 v{x}, v{x}, s{sC}, -v{T0}", [f"v{x}"], [f"v{x}", f"v{T0}"]))
        p.append(TRN(f"v_exp_f32 v{x}, v{x}", [f"v{x}"], [f"v{x}"]))
    PX, LA, OA = Mk(2), Mk(3), vAQ
    for k in range(4): cvt(p, PX + k, s_[2 * k], s_[2 * k + 1])
    p.append(MFMA(f"v_mfma_f32_16x16x32_bf16 {vr(LA,4)}, {vr(vSEL,4)}, {vr(PX,4)}, 0", [vr(LA,4)], [vr(vSEL,4), vr(PX,4)], first=True))
    for t in range(2):
        p.append(MFMA(f"v_mfma_f32_16x16x32_bf16 {vr(OA+4*t,4)}, {vr(vVXc+4*t,4)}, {vr(PX,4)}, 0", [vr(OA+4*t,4)], [vr(vVXc+4*t,4), vr(PX,4)], first=True))
    m0, m1 = SA[2], SA[2] + 1
    for x in (m0, m1): p.append(V(f"v_fma_f32 v{x}, v{x}, s{sC}, -v{T0}", [f"v{x}"], [f"v{x}", f"v{T0}"]))
    p.append(V(f"v_max_f32 v{T1}, v{m0}, v{m1}", [f"v{T1}"], [f"v{m0}", f"v{m1}"]))
    p.append(V(f"v_cmp_lt_f32 vcc, 0x42700000, v{T1}", ["vcc"], [f"v{T1}"]))
    fx = I("FIXPOINT", "salu", [f"v{m0}", f"v{m1}", f"v{T1}", f"v{P+18}", vr(OA, 8), vr(LA, 4)], ["vcc", f"v{m0}", f"v{m1}", f"v{T1}", vr(OA, 8), vr(LA, 4)], tag="fix")
    p.append(fx)
    FIXES.append(dict(m0=m0, m1=m1, d=T1, tmp=P + 18, OA=OA, LA=LA))
    for x in (m0, m1): p.append(TRN(f"v_exp_f32 v{x}, v{x}", [f"v{x}"], [f"v{x}"]))
    cvt(p, vPM, m0, m1)
    for t, vm in ((0, vVM0), (1, vVM1)):
        post_halves(p, vAV + 4 * t); cvt(p, vm, vAV + 4 * t, vAV + 4 * t + 1)
    if "pub" not in DROP:
        publish(p, sKV); p[-1].prio = 1500
    FS = [vAK, P, P + 8, Mk(0), Mk(4), Mk(6), Mk(2)]
    NF = len(FS)
    def frag(f):
        j, kap = f >> 2, f & 3
        wo = vWO0 if kap < 2 else vWO1
        d = FS[f % NF]
        o = j * 4096 + (kap & 1) * 2048
        p.append(DSR(f"ds_read_b128 {vr(d,4)}, v{wo} offset:{o}", [vr(d,4)], [f"v{wo}"]))
        p.append(DSR(f"ds_read_b128 {vr(d+4,4)}, v{wo} offset:{o+1024}", [vr(d+4,4)], [f"v{wo}"]))
    for f in range(NF - 1): frag(f)
    MK(p, 4)
    p.append(MFMA(f"v_mfma_f32_16x16x32_bf16 {vr(LA,4)}, {vr(vSEL,4)}, {vr(vPM,4)}, {vr(LA,4)}", [vr(LA,4)], [vr(vSEL,4), vr(vPM,4), vr(LA,4)]))
    for t, vm in ((0, vVM0), (1, vVM1)):
        p.append(MFMA(f"v_mfma_f32_16x16x32_bf16 {vr(OA+4*t,4)}, {vr(vm,4)}, {vr(vPM,4)}, {vr(OA+4*t,4)}", [vr(OA+4*t,4)], [vr(vm,4), vr(vPM,4), vr(OA+4*t,4)]))
    HM = f"s[{sHALF}:{sHALF+1}]"
    p.append(V(f"v_add_f32 v{LA}, v{LA}, v{LA+1}", [f"v{LA}"], [f"v{LA}", f"v{LA+1}"]))
    p.append(TRN(f"v_rcp_f32 v{LA}, v{LA}", [f"v{LA}"], [f"v{LA}"]))
    for t in range(2):
        r = OA + 4 * t
        p.append(V(f"v_cndmask_b32 v{r}, v{r+2}, v{r}, {HM}", [f"v{r}"], [f"v{r}", f"v{r+2}"]))
        p.append(V(f"v_cndmask_b32 v{r+1}, v{r+3}, v{r+1}, {HM}", [f"v{r+1}"], [f"v{r+1}", f"v{r+3}"]))
        p.append(V(f"v_mul_f32 v{r}, v{r}, v{LA}", [f"v{r}"], [f"v{r}", f"v{LA}"]))
        p.append(V(f"v_mul_f32 v{r+1}, v{r+1}, v{LA}", [f"v{r+1}"], [f"v{r+1}", f"v{LA}"]))
        cvt(p, r, r, r + 1)
        p.append(DSW(f"ds_write_b32 v{vOW}, v{r} offset:{t*32}", [f"v{vOW}", f"v{r}"]))
    ACC = [P + 16, vAQ + 4]
    frag(NF - 1)
    p.append(BAR())
    OO = [vVXc, vVXc + 4, vAV, vAV + 4]
    OUT = [vAQ, vAQ]
    for kap in range(4):
        p.append(DSR(f"ds_read_b128 {vr(OO[kap],4)}, v{vOR} offset:{kap*64}", [vr(OO[kap],4)], [f"v{vOR}"]))
    nxt = NF
    MK(p, 5)
    for j in range(4):
        a = ACC[j % 2]
        p.append(V(f"v_mov_b64 {vr(a,2)}, 0", [vr(a,2)], []))
        p.append(V(f"v_mov_b64 {vr(a+2,2)}, 0", [vr(a+2,2)], []))
        for kap in range(4):
            f = 4 * j + kap; d = FS[f % NF]
            p.append(SMF(f"v_smfmac_f32_16x16x64_bf16 {vr(a,4)}, {vr(OO[kap],4)}, {vr(d,8)}, v{vIDX}", [vr(a,4)], [vr(a,4), vr(OO[kap],4), vr(d,8), f"v{vIDX}"]))
            if nxt < 16: frag(nxt); nxt += 1
        o = OUT[j >> 1]
        for tp in range(2):
            cvt(p, o + 2 * (j & 1) + tp, a + 2 * tp, a + 2 * tp + 1)
        if j & 1 and "rss" not in DROP:
            cg = j >> 1
            if RSTAG: p.append(V(f"v_and_or_b32 v{o}, v{o}, -2, s{sTAG}", [f"v{o}"], [f"v{o}"]))
            p.append(VMS(f"buffer_store_dwordx4 {vr(o,4)}, v{vRSS}, {WS}, s{sRT+cg} offen{sc}", [vr(o,4), f"v{vRSS}", f"s{sRT+cg}"]))
    return p
NV1 = 4

def emit_fixes(A):
    for f in FIXES:
        if "lab" not in f: continue
        A.put(f["lab"])
        d, t = f["d"], f["tmp"]
        nop(A, 10)
        for sw in ("v_permlane16_swap_b32", "v_permlane32_swap_b32"):
            A.e(f"v_mov_b32 v{t}, v{d}", "s_nop 1", f"{sw} v{d}, v{t}", "s_nop 1", f"v_max_f32 v{d}, v{d}, v{t}")
        A.e(f"v_max_f32 v{d}, 0, v{d}", f"v_sub_f32 v{f['m0']}, v{f['m0']}, v{d}", f"v_sub_f32 v{f['m1']}, v{f['m1']}, v{d}",
            f"v_sub_f32 v{d}, 0, v{d}", f"v_exp_f32 v{d}, v{d}", "s_nop 0")
        for k in range(8): A.e(f"v_mul_f32 v{f['OA']+k}, v{f['OA']+k}, v{d}")
        for k in range(4): A.e(f"v_mul_f32 v{f['LA']+k}, v{f['LA']+k}, v{d}")
        A.e("s_nop 1", f"s_branch {f['ret']}")
    FIXES.clear()

def emit_sched(A, prog, verbose=False):
    lines, est, _, _ = schedule(prog, verbose=verbose)
    A.c(f"scheduled region: {len(prog)} instructions, model estimate {est} cycles")
    nvm = 0
    for l in lines:
        if l.startswith("buffer_"): nvm += 1
        if l.startswith("WAITVM"): l = f"s_waitcnt vmcnt({nvm})"
        if l.startswith("FIXPOINT"):
            f = next(x for x in FIXES if "lab" not in x)
            f["lab"], f["ret"] = A.label("fix"), A.label("fixret")
            A.e(f"s_cbranch_vccnz {f['lab']}"); A.put(f["ret"])
            continue
        A.e(l)
    return est

NATURAL = False
def pre_regs(A, first=False):
    for k in range(0, 16 if EARLYX else 24, 2): A.e(f"v_mov_b64 {vr(vAQ+k,2)}, 0")
    if not first:
        for k in range(0, 8, 2): A.e(f"v_mov_b64 {vr(vVXc+k,2)}, {vr(vVXn+k,2)}")

def pre_poll(A, sc, first=False):
    P = vP
    if not first and "rst" not in DROP:
        A.c("hand the consumed m ring back")
        for k in range(2 if RSTAG else 4): A.e(f"v_mov_b32 v{P+10+k}, -1")
        if not RSTAG: A.e(f"buffer_store_dwordx4 {vr(P+10,4)}, v{vRSL}, {WS}, s{sRSR} offen{sc}", f"buffer_store_dwordx4 {vr(P+10,4)}, v{vRSL}, {WS}, s{sRSR1} offen{sc}")
        A.e(f"buffer_store_dwordx2 {vr(P+10,2)}, v{vAGS}, {WS}, s{sAGR} offen{sc}")
    if not first:
        A.e(f"s_mov_b32 s{sT0}, s{sAGR}", f"s_mov_b32 s{sAGR}, s{sAGW}", f"s_mov_b32 s{sAGW}, s{sAGZ}", f"s_mov_b32 s{sAGZ}, s{sT0}",
            f"s_add_u32 s{sKV}, s{sKV}, 0x40000")
        if RSTAG: A.e(f"s_xor_b32 s{sTAG}, s{sTAG}, 1")
        else: A.e(f"s_xor_b32 s{sRSR}, s{sRSR}, {SLOT:#x}", f"s_xor_b32 s{sRSR1}, s{sRSR1}, {SLOT:#x}",
            f"s_xor_b32 s{sRT}, s{sRT}, {SLOT:#x}", f"s_xor_b32 s{sRT+1}, s{sRT+1}, {SLOT:#x}")
    if first or not NATURAL: pre_regs(A, first)
    A.e(f"s_add_u32 s{sKXS}, s{sKXS}, 0x40000", f"s_add_u32 s{sVXS}, s{sVXS}, 0x40000", f"s_xor_b32 s{sM0KX}, s{sM0KX}, 0x2000", f"s_mov_b32 m0, s{sM0KX}")

CDELAY = 0
RSW = 1
AG2 = False
AG2GAP = 20
MASKED = True
RSX2 = False
RSPRIO = 0
RSTAG = True
sTAG = 56
RSLAY = 0
CS = 8192
SLOT = 0x40000
RS_DELAY = 0
AG_DELAY = 0
NSET = 1
PGAP = 24
def poll_loop(A, end_label, sets, issue, consume, done):
    n = len(sets)
    top = A.label("poll"); join = A.label("poll_join")
    oks = [A.label("poll_ok") for _ in sets]
    for k, b in enumerate(sets):
        issue(b)
        if k < n - 1 and PGAP: nop(A, PGAP)
    A.put(top)
    for k, b in enumerate(sets):
        A.e(f"s_waitcnt vmcnt({2 * (n - 1)})")
        consume(b)
        A.e(f"s_cbranch_vccz {oks[k]}")
        issue(b)
    A.e(f"s_add_u32 s{sPOLL}, s{sPOLL}, 1", f"s_cmp_lt_u32 s{sPOLL}, 0x40000", f"s_cbranch_scc1 {top}", f"s_branch {end_label}")
    for k, b in enumerate(sets):
        A.put(oks[k])
        done(b)
        if k < n - 1: A.e(f"s_branch {join}")
    A.put(join)

def sentinel_check(A, b, t):
    if "tag" in DROP:
        A.e(f"v_min3_u32 v{t}, v{b}, v{b+1}, v{b+2}", f"v_min3_u32 v{t+1}, v{b+3}, v{b+4}, v{b+5}", f"v_min3_u32 v{t}, v{t}, v{b+6}, v{b+7}",
            f"v_min_u32 v{t}, v{t}, v{t+1}", f"v_cmp_gt_u32 vcc, s{sS}, v{t}")
        return
    A.e(f"v_max3_u32 v{t}, v{b}, v{b+1}, v{b+2}", f"v_max3_u32 v{t+1}, v{b+3}, v{b+4}, v{b+5}", f"v_max3_u32 v{t}, v{t}, v{b+6}, v{b+7}",
        f"v_max_u32 v{t}, v{t}, v{t+1}", f"v_cmp_eq_u32 vcc, -1, v{t}")

def ag_poll2(A, end_label):
    P = vP
    sets = [P, vVXn - 0][:1] if False else [P, P + 10] + ([vAK - 0] if False else [])
    sets = sets[:NSET] if NSET <= 2 else sets
    def issue(b):
        A.e(f"buffer_load_dwordx4 {vr(b,4)}, v{vLIN}, {WS}, s{sAGR} offen sc1", f"buffer_load_dwordx4 {vr(b+4,4)}, v{vLIN}, {WS}, s{sAGR} offen offset:1024 sc1")
    def consume(b):
        A.e(f"ds_write_b128 v{vAGW0}, {vr(b,4)}", f"ds_write_b128 v{vAGW1}, {vr(b+4,4)}")
        sentinel_check(A, b, P + 8)
    poll_loop(A, end_label, sets, issue, consume, lambda b: None)
    A.e("s_waitcnt lgkmcnt(0)")

def ag_poll(A, end_label):
    if NSET > 1 and "poll" not in DROP: return ag_poll2(A, end_label)
    P = vP
    pa = A.label("poll_ag")
    def body():
        A.e(f"buffer_load_dwordx4 {vr(P,4)}, v{vLIN}, {WS}, s{sAGR} offen sc1", f"buffer_load_dwordx4 {vr(P+4,4)}, v{vLIN}, {WS}, s{sAGR} offen offset:1024 sc1",
            "s_waitcnt vmcnt(0)",
            f"ds_write_b128 v{vAGW0}, {vr(P,4)}", f"ds_write_b128 v{vAGW1}, {vr(P+4,4)}")
        sentinel_check(A, P, P + 8)
    if MASKED and AG2 and "poll" not in DROP:
        ok = A.label("ag_ok"); fin_ = A.label("ag_fin")
        def ld(): A.e(f"buffer_load_dwordx4 {vr(P,4)}, v{vLIN}, {WS}, s{sAGR} offen sc1", f"buffer_load_dwordx4 {vr(P+4,4)}, v{vLIN}, {WS}, s{sAGR} offen offset:1024 sc1")
        body()
        A.e(f"s_cbranch_vccz {ok}")
        A.c("two re-reads of the missing lanes stay in flight; every word only ever changes from the fill pattern to its final value")
        A.e("s_mov_b64 exec, vcc")
        ld(); nop(A, AG2GAP)
        A.put(pa)
        ld()
        A.e("s_waitcnt vmcnt(2)")
        sentinel_check(A, P, P + 8)
        A.e(f"s_cbranch_vccz {fin_}", "s_mov_b64 exec, vcc", f"s_add_u32 s{sPOLL}, s{sPOLL}, 1", f"s_cmp_lt_u32 s{sPOLL}, 0x80000", f"s_cbranch_scc1 {pa}", f"s_branch {end_label}")
        A.put(fin_)
        if C1.TOTAL: A.e("s_add_u32 s88, s88, 1")
        A.e("s_mov_b64 exec, -1", f"ds_write_b128 v{vAGW0}, {vr(P,4)}", f"ds_write_b128 v{vAGW1}, {vr(P+4,4)}")
        A.put(ok)
    elif MASKED and "poll" not in DROP:
        ok = A.label("ag_ok")
        body()
        A.e(f"s_cbranch_vccz {ok}")
        A.put(pa)
        A.e("s_mov_b64 exec, vcc")
        body()
        retry(A, pa, end_label, 88)
        if C1.TOTAL: A.e("s_add_u32 s88, s88, 1")
        A.e("s_mov_b64 exec, -1")
        A.put(ok)
    else:
        A.put(pa)
        body()
        if "poll" not in DROP: retry(A, pa, end_label, 88)
    A.e("s_waitcnt lgkmcnt(0)")

EARLYPF = False
sPF0 = 69
def first_fetch(A):
    A.c("---- first fetch: K_x(0) -> buffer 0, V_x(0)")
    A.e(f"s_lshl_b32 s{sT0}, s{sH}, 13", f"s_add_u32 s{sKXS}, s{sT0}, {KB:#x}", f"s_add_u32 s{sVXS}, s{sT0}, {VT:#x}",
        f"s_add_u32 s{sKV}, s{sT0}, {KV:#x}",
        f"s_lshl_b32 s{sM0KX}, s{sW}, 11", f"s_add_u32 s{sM0KX}, s{sM0KX}, {L_KX}",
        f"s_mov_b32 m0, s{sM0KX}", "s_nop 0",
        f"buffer_load_dwordx4 v{vLIN}, {WS}, s{sKXS} offen{LDSC} lds", f"buffer_load_dwordx4 v{vLIN}, {WS}, s{sKXS} offen offset:1024{LDSC} lds",
        f"buffer_load_dwordx4 {vr(vVXc,4)}, v{vLIN}, {WS}, s{sVXS} offen{LDSC}", f"buffer_load_dwordx4 {vr(vVXc+4,4)}, v{vLIN}, {WS}, s{sVXS} offen offset:1024{LDSC}")

def step_loop(A, sc, end_label, verbose=False):
    loop = A.label("step"); pr = A.label("poll_rs"); fin = A.label("fin")
    if WAIT_KV is not None:
        if not LATE_MODE: A.e(f"s_mov_b32 s{sRDY}, 0")
        A.e(f"s_mov_b32 s{sT1}, 0")
        if C1.TOTAL: A.e("s_mov_b32 s87, 0", "s_mov_b32 s86, 0")
        need_rb(A, end_label, sT1)
    sel_masks(A)
    rstamp(A, 2)
    hstamp(A, 1)
    if EARLYPF:
        have = A.label("pf0")
        A.e(f"s_cmp_eq_u32 s{sPF0}, 1", f"s_cbranch_scc1 {have}")
        first_fetch(A); A.put(have)
    else:
        first_fetch(A)
    A.e(f"s_mov_b32 s{sTAG}, 0")
    if TAILFLAG: A.e(f"s_mov_b32 s{sFLV}, 0")
    A.e(f"s_mov_b32 s{sS}, 0", f"s_mov_b32 s{sAGR}, {AG:#x}", f"s_mov_b32 s{sAGW}, {AG+8192:#x}", f"s_mov_b32 s{sAGZ}, {AG+16384:#x}",
        f"s_mul_i32 s{sT0}, s{sH}, {CS}", f"s_add_u32 s{sRSR}, s{sT0}, {RS:#x}", f"s_add_u32 s{sRSR1}, s{sRSR}, {4096 if RSLAY == 0 else 1024}",
        f"s_mov_b32 s{sRT}, {RS:#x}", f"s_mov_b32 s{sRT+1}, {RS + 4*CS:#x}")
    A.e("s_waitcnt vmcnt(0)")
    pre_poll(A, sc, True)
    hstamp(A, 2)
    prof_init(A)
    A.put(loop)
    if C1.TOTAL:
        for st_, k_ in ((1, 5), (2, 6)):
            sk_ = A.label("st1")
            A.e(f"s_cmp_lg_u32 s{sS}, {st_}", f"s_cbranch_scc1 {sk_}", "s_memrealtime s[96:97]", "s_waitcnt lgkmcnt(0)", f"s_cmp_lg_u32 s{sH}, 0", f"s_cbranch_scc1 {sk_}",
                f"s_cmp_lg_u32 s{sW}, 0", f"s_cbranch_scc1 {sk_}", f"v_mov_b32 v126, {0x04182030+4*(k_-5):#x}", "v_mov_b32 v127, s96", "global_store_dword v126, v127, s[6:7]")
            A.put(sk_)
    trace(A, 0)
    ag_poll(A, end_label)
    trace(A, 1)
    mark(A, 0)
    A.e(f"s_cmp_eq_u32 s{sS}, 63", f"s_cbranch_scc1 {fin}")
    if "compute" in DROP:
        A.e("s_barrier", f"s_add_u32 s{sT0}, s{sS}, 1")
        for k in range(4): A.e(f"v_mov_b32 v{vAQ+k}, s{sT0}")
        nop(A, CDELAY)
        if RSTAG: A.e(f"v_and_or_b32 v{vAQ}, v{vAQ}, -2, s{sTAG}")
        for cg in range(2): A.e(f"buffer_store_dwordx4 {vr(vAQ,4)}, v{vRSS}, {WS}, s{sRT+cg} offen{sc}")
    else:
        emit_sched(A, region_b(sc) if EARLYX else region_a_full(sc), verbose)
    trace(A, 2)
    if "compute" not in DROP: mark(A, 6)
    if STOP_AFTER_A: A.e("s_waitcnt vmcnt(0)", f"s_branch {end_label}")
    if "waitst" in DROP: A.e("s_waitcnt vmcnt(0)")
    mark(A, 5) if "compute" in DROP else None
    sel_rebuild(A, vM + 16)
    if NATURAL:
        A.c("the first column group's stores are acknowledged about when the other heads' last ones become visible")
        A.e(f"s_waitcnt vmcnt({RSW})", "s_nop 1")
        pre_regs(A)
    nop(A, RS_DELAY)
    trace(A, 3)
    A.c("---- RS poll and reduce")
    D = vM
    R = D + 12
    if NSET > 1 and "poll" not in DROP:
        sets = [D, D + 16, D + 24][:NSET]
        def issue(b):
            A.e(f"buffer_load_dwordx4 {vr(b,4)}, v{vRSL}, {WS}, s{sRSR} offen sc1", f"buffer_load_dwordx4 {vr(b+4,4)}, v{vRSL}, {WS}, s{sRSR1} offen sc1")
        def consume(b):
            A.e(f"v_mfma_f32_16x16x32_bf16 {vr(R,4)}, {vr(vSELQ,4)}, {vr(b,4)}, 0", f"v_mfma_f32_16x16x32_bf16 {vr(R,4)}, {vr(vSELQ,4)}, {vr(b+4,4)}, {vr(R,4)}")
            sentinel_check(A, b, D + 8)
        poll_loop(A, end_label, sets, issue, consume, lambda b: None)
    else:
        def loads():
            A.e(f"buffer_load_dwordx4 {vr(D,4)}, v{vRSL}, {WS}, s{sRSR} offen sc1", f"buffer_load_dwordx4 {vr(D+4,4)}, v{vRSL}, {WS}, s{sRSR1} offen sc1", "s_waitcnt vmcnt(0)")
        def mf():
            A.e(f"v_mfma_f32_16x16x32_bf16 {vr(R,4)}, {vr(vSELQ,4)}, {vr(D,4)}, 0", f"v_mfma_f32_16x16x32_bf16 {vr(R,4)}, {vr(vSELQ,4)}, {vr(D+4,4)}, {vr(R,4)}")
        def check():
            if RSTAG:
                if RSX2:
                    A.e(f"v_xor_b32 v{D+8}, s{sTAG}, v{D}", f"v_xor_b32 v{D+9}, s{sTAG}, v{D+4}", f"v_xor_b32 v{D+10}, s{sTAG}, v{D+2}", f"v_xor_b32 v{D+11}, s{sTAG}, v{D+6}",
                        f"v_or3_b32 v{D+8}, v{D+8}, v{D+9}, v{D+10}", f"v_or_b32 v{D+8}, v{D+8}, v{D+11}", f"v_and_b32 v{D+8}, 1, v{D+8}", f"v_cmp_eq_u32 vcc, 1, v{D+8}")
                else:
                    A.e(f"v_xor_b32 v{D+8}, s{sTAG}, v{D}", f"v_xor_b32 v{D+9}, s{sTAG}, v{D+4}", f"v_or_b32 v{D+8}, v{D+8}, v{D+9}", f"v_and_b32 v{D+8}, 1, v{D+8}",
                        f"v_cmp_eq_u32 vcc, 1, v{D+8}")
            else:
                sentinel_check(A, D, D + 8)
        if MASKED and "poll" not in DROP:
            ok = A.label("rs_ok")
            loads(); mf(); check()
            A.e(f"s_cbranch_vccz {ok}")
            A.put(pr)
            A.e("s_mov_b64 exec, vcc")
            loads(); check()
            retry(A, pr, end_label, 89)
            if C1.TOTAL: A.e("s_add_u32 s89, s89, 1")
            A.e("s_mov_b64 exec, -1", "s_nop 1")
            mf()
            nop(A, 6)
            A.put(ok)
        else:
            A.put(pr)
            loads(); mf(); check()
            if "poll" not in DROP: retry(A, pr, end_label, 89)
    mark(A, 7)
    trace(A, 4)
    A.e("s_nop 2")
    for rot in (4, 8):
        for r in range(4): A.e(f"v_add_f32_dpp v{R+r}, v{R+r}, v{R+r} row_ror:{rot} row_mask:0xf bank_mask:0xf")
    A.e(f"v_cvt_pk_bf16_f32 v{R}, v{R}, v{R+1}", f"v_cvt_pk_bf16_f32 v{R+1}, v{R+2}, v{R+3}",
        f"v_min_u32 v{R}, -2, v{R}", f"v_min_u32 v{R+1}, -2, v{R+1}")
    if "tag" in DROP: A.e(f"s_add_u32 s{sT0}, s{sS}, 1", f"v_mov_b32 v{R}, s{sT0}", f"v_mov_b32 v{R+1}, s{sT0}")
    A.e(
        f"buffer_store_dwordx2 {vr(R,2)}, v{vAGS}, {WS}, s{sAGW} offen{sc}")
    mark(A, 8)
    trace(A, 5)
    pre_poll(A, sc)
    if WAIT_KV is not None:
        A.e(f"s_add_u32 s{sT1}, s{sS}, 2", f"s_lshr_b32 s{sT1}, s{sT1}, 2", f"s_min_u32 s{sT1}, s{sT1}, 15")
        need_rb(A, end_label, sT1)
    trace(A, 6)
    if NATURAL: A.e("s_waitcnt vmcnt(0)")
    nop(A, AG_DELAY)
    prof_step(A)
    A.e(f"s_add_u32 s{sS}, s{sS}, 1")
    if TAILFLAG: A.e(f"s_mov_b32 s{sFLV}, s{sS}")
    A.e(f"s_branch {loop}")
    A.put(fin)
    A.c("---- last segment: only k and v of m_63 are needed")
    p = [BAR()]
    m_reads(p)
    if EARLYX:
        for k in range(0, 8, 2): p.append(V(f"v_mov_b64 {vr(vAV+k,2)}, 0", [vr(vAV+k,2)], []))
    if TAILFLAG:
        p.append(V(f"v_mov_b32 v{vP+9}, s{sFLV}", [f"v{vP+9}"], []))
        p.append(VMS(f"buffer_store_dword v{vP+9}, off, {WS}, s{sFLO} sc1", [f"v{vP+9}", f"s{sFLO}"], tag="afterbar"))
    for acc, w_ in ((vAK, wk), (vAV, wv)):
        for ks in range(8):
            for t in range(2): p.append(smf(acc + 4 * t, ks, w_(t, ks)))
    for t, kp in ((0, vKP0), (1, vKP1)):
        post_halves(p, vAK + 4 * t); cvt(p, kp, vAK + 4 * t, vAK + 4 * t + 1)
    for t, vm in ((0, vVM0), (1, vVM1)):
        post_halves(p, vAV + 4 * t); cvt(p, vm, vAV + 4 * t, vAV + 4 * t + 1)
    publish(p, sKV)
    emit_sched(A, p)
    if TAILFLAG:
        fin_flag(A, end_label)
    trace_out(A)
    rstamp(A, 3)
    if C1.TOTAL and WAIT_KV is not None:
        sk = A.label("kvw")
        A.e(f"s_cmp_lg_u32 s{sH}, 0", f"s_cbranch_scc1 {sk}", f"s_cmp_lg_u32 s{sW}, 0", f"s_cbranch_scc1 {sk}",
            "v_mov_b32 v126, 0x04182020", "v_mov_b32 v124, s87", "v_mov_b32 v125, s86", "global_store_dwordx2 v126, v[124:125], s[6:7]")
        if DBGSTAMP: A.e("v_mov_b32 v126, 56", "global_store_dword v126, v124, s[4:5]")
        A.put(sk)
    prof_out(A)
    A.e(f"s_branch {end_label}")
    emit_fixes(A)

WAIT_KV = None
sRDY = 95
sFLO, sFLV = 99, 98
TAILFLAG = False
D_INIT = 4
LDSC = " sc1"
TRACE = False
DBGSTAMP = False
FORCE_SC1 = False
TOUCH = False
def trace(A, k):
    if TRACE:
        sk = A.label("tr")
        A.e(f"s_cmp_lg_u32 s{sS}, 30", f"s_cbranch_scc1 {sk}", f"s_memrealtime s[{70+2*k}:{71+2*k}]")
        A.put(sk)
def trace_out(A):
    if TRACE:
        A.e("s_waitcnt lgkmcnt(0)", f"s_lshl_b32 s93, s{sH}, 2", f"s_add_u32 s93, s93, s{sW}", "s_lshl_b32 s93, s93, 5", "s_add_u32 s93, s93, 0x04184000", "v_mov_b32 v40, 0")
        for k in range(8): A.e(f"v_mov_b32 v{44+k}, s{70+2*k}")
        A.e("s_mov_b64 exec, 1", f"buffer_store_dwordx4 v[44:47], v40, {WS}, s93 offen", f"buffer_store_dwordx4 v[48:51], v40, {WS}, s93 offen offset:16", "s_mov_b64 exec, -1")

def hstamp(A, k):
    if C1.TOTAL:
        sk = A.label("hst")
        A.e("s_memrealtime s[96:97]", "s_waitcnt lgkmcnt(0)", f"s_cmp_lg_u32 s{sW}, 0", f"s_cbranch_scc1 {sk}", f"s_lshl_b32 s97, s{sH}, 2", f"s_add_u32 s97, s97, {0x04182200+128*k:#x}",
            "v_mov_b32 v126, s97", "v_mov_b32 v127, s96", "global_store_dword v126, v127, s[6:7]")
        A.put(sk)

def rstamp(A, k):
    if C1.TOTAL:
        sk = A.label("rst")
        A.e("s_memrealtime s[96:97]", "s_waitcnt lgkmcnt(0)", f"s_cmp_lg_u32 s{sH}, 0", f"s_cbranch_scc1 {sk}", f"s_cmp_lg_u32 s{sW}, 0", f"s_cbranch_scc1 {sk}",
            f"v_mov_b32 v126, {0x04182004+4*k:#x}", "v_mov_b32 v127, s96", "global_store_dword v126, v127, s[6:7]")
        if DBGSTAMP: A.e(f"v_mov_b32 v126, {[24, 28, 40, 44][k]}", "global_store_dword v126, v127, s[4:5]")
        A.put(sk)

def chain_role(A, end, verbose=False):
    A.e("s_load_dwordx4 s[44:47], s[0:1], 8", "s_load_dwordx4 s[48:51], s[0:1], 24", "s_load_dwordx2 s[52:53], s[0:1], 40", "s_waitcnt lgkmcnt(0)")
    srd(A, SWS, sWSP, WS_BYTES); srd(A, SM0, 44, 8192); srd(A, SWQ, 46, 4 << 20); srd(A, SWK, 48, 4 << 20); srd(A, SWV, 50, 4 << 20); srd(A, SWO, 52, 4 << 20)
    A.e(f"s_mov_b32 s{sPOLL}, 0")
    rstamp(A, 0)
    chain_body(A, end, verbose)

LATE_MODE = False
def chain_body(A, end, verbose):
    lane_consts(A)
    dma_consts(A)
    slow = A.label("slowpath")
    if LATE_MODE:
        init_issue(A, " sc1")
        if TOUCH:
            A.e("v_lshlrev_b32 v62, 20, v40", f"v_add_u32 v62, {KB + 0x800:#x}, v62", f"buffer_load_dword v63, v62, {WS}, 0 offen sc1")
        for c in range(4): issue_chunk(A, c)
        go = A.label("go")
        def h13():
            A.c("status words travel with the last weight chunks: chain barrier, tickets of die 0, K/V counters")
            A.e("v_mov_b32 v126, 0", "v_and_b32 v125, 15, v40", "v_lshlrev_b32 v125, 2, v125",
                f"global_load_dword v127, v126, s[{sDBG}:{sDBG+1}] offset:{CTL_BAR} sc1", f"global_load_dword v124, v126, s[{sDBG}:{sDBG+1}] sc1")
            if WAIT_KV is not None: A.e(f"global_load_dword v123, v125, s[{sDBG}:{sDBG+1}] offset:{WAIT_KV} sc1")
        def h15():
            A.e(f"v_readfirstlane_b32 s{sPF0-2}, v127", f"v_readfirstlane_b32 s{sPF0-1}, v124", f"s_mov_b32 s{sRDY}, 0", f"s_mov_b32 s{sPF0}, 0")
            if WAIT_KV is not None:
                sk = A.label("nopf")
                A.e("v_and_b32 v123, 0xffff, v123", "v_cmp_le_u32 vcc, 64, v123", "s_nop 3", f"s_not_b32 s{sT2}, vcc_lo", f"s_or_b32 s{sT2}, s{sT2}, 0x10000", f"s_ff1_i32_b32 s{sRDY}, s{sT2}",
                    f"s_cmp_eq_u32 s{sRDY}, 0", f"s_cbranch_scc1 {sk}")
                first_fetch(A)
                A.e(f"s_mov_b32 s{sPF0}, 1")
                A.put(sk)
        load_weights(A, " sc1", h13, h15)
        rstamp(A, 1)
        hstamp(A, 0)
        if C1.TOTAL:
            sk_ = A.label("hwid")
            A.e("s_getreg_b32 s96, hwreg(HW_REG_HW_ID)", f"s_cmp_lg_u32 s{sW}, 0", f"s_cbranch_scc1 {sk_}", f"s_lshl_b32 s97, s{sH}, 2", f"s_add_u32 s97, s97, {0x04182200+128*3:#x}",
                "v_mov_b32 v126, s97", "v_mov_b32 v127, s96", "global_store_dword v126, v127, s[6:7]")
            A.put(sk_)
        A.e(f"s_mov_b32 s{sT0}, s{sPF0-2}", f"s_mov_b32 s{sT1}, s{sPF0-1}")
        A.e("s_nop 3", f"s_cmp_ge_u32 s{sT0}, 32", f"s_cbranch_scc1 {go}")
        chain_barrier(A, end)
        A.e("v_mov_b32 v126, 0", f"global_load_dword v127, v126, s[{sDBG}:{sDBG+1}] sc1", "s_waitcnt vmcnt(0)", "s_nop 0", f"v_readfirstlane_b32 s{sT1}, v127", "s_nop 3")
        A.put(go)
        A.e(f"s_cmp_lt_u32 s{sT1}, 32", f"s_cbranch_scc1 {slow}")
        step_loop(A, " sc1" if FORCE_SC1 else "", end, verbose)
        A.put(slow)
        step_loop(A, " sc1", end, False)
        return
    A.e(f"s_cmp_eq_u32 s{sMODE}, 2", f"s_cbranch_scc1 {slow}")
    for sc, lab in ((" sc1" if FORCE_SC1 else "", None), (" sc1", slow)):
        if lab: A.put(lab)
        init_issue(A, sc)
        for c in range(4): issue_chunk(A, c)
        load_weights(A, sc)
        rstamp(A, 1)
        chain_barrier(A, end)
        step_loop(A, sc, end, verbose and not lab)

def chain_barrier(A, end_label):
    A.e("s_waitcnt vmcnt(0)")

D_FIN = 212
FINLINE = None
sFIN = 94
FINLINES = [0]
def fin_flag(A, bail):
    sk = A.label("finflag")
    if FINLINE is not None:
        A.e("s_waitcnt vmcnt(0)", "s_barrier", "v_mov_b32 v127, 1", f"buffer_store_dword v127, off, {WS}, s{sFIN} sc1")
        return
    A.e("s_waitcnt vmcnt(0)", "s_barrier", f"s_cmp_lg_u32 s{sW}, 0", f"s_cbranch_scc1 {sk}", "s_mov_b64 exec, 1", "v_mov_b32 v126, 0", "v_mov_b32 v127, 1",
        f"global_atomic_add v125, v126, v127, s[{sDBG}:{sDBG+1}] offset:{D_FIN} sc0", "s_waitcnt vmcnt(0)", "s_nop 0", f"v_readfirstlane_b32 s{sT0}, v125", "s_nop 3",
        f"s_cmp_lg_u32 s{sT0}, 31", f"s_cbranch_scc1 {sk}_x", "v_mov_b32 v127, 64")
    for line in FINLINES: A.e(f"s_mov_b32 s{sT0}, {FLG + line*128:#x}", f"buffer_store_dword v127, off, {WS}, s{sT0} sc1")
    A.put(f"{sk}_x")
    A.e("s_mov_b64 exec, -1")
    A.put(sk)

def need_rb(A, bail, sreg):
    if WAIT_KV is None: return
    ok = A.label("kv_ok"); again = A.label("kv_again")
    A.e(f"s_cmp_lt_u32 s{sreg}, s{sRDY}", f"s_cbranch_scc1 {ok}")
    if C1.TOTAL: A.e("s_memrealtime s[96:97]", "s_waitcnt lgkmcnt(0)", "s_sub_u32 s87, s87, s96")
    A.put(again)
    A.e("v_mbcnt_lo_u32_b32 v80, -1, 0", "v_mbcnt_hi_u32_b32 v80, -1, v80", "v_and_b32 v80, 15, v80", "v_lshlrev_b32 v80, 2, v80",
        f"global_load_dword v81, v80, s[{sDBG}:{sDBG+1}] offset:{WAIT_KV} sc1", "s_waitcnt vmcnt(0)",
        "v_and_b32 v81, 0xffff, v81", "v_cmp_le_u32 vcc, 64, v81", "s_nop 3", f"s_not_b32 s{sT0}, vcc_lo", f"s_or_b32 s{sT0}, s{sT0}, 0x10000", f"s_ff1_i32_b32 s{sRDY}, s{sT0}",
        f"s_cmp_lt_u32 s{sreg}, s{sRDY}", f"s_cbranch_scc1 {ok}_t",
        f"s_add_u32 s{sPOLL}, s{sPOLL}, 1", f"s_cmp_lt_u32 s{sPOLL}, 0x80000", f"s_cbranch_scc0 {bail}", "s_sleep 32", f"s_branch {again}")
    A.put(f"{ok}_t")
    if C1.TOTAL: A.e("s_memrealtime s[96:97]", "s_waitcnt lgkmcnt(0)", "s_add_u32 s87, s87, s96", "s_add_u32 s86, s86, 1")
    A.put(ok)

def gen_chain_kernel(A, name, verbose=False):
    kernel_header(A, name)
    end = A.label("end")
    A.e("s_cmp_ge_u32 s2, 256", f"s_cbranch_scc1 {end}")
    A.e("s_load_dwordx4 s[44:47], s[0:1], 8", "s_load_dwordx4 s[48:51], s[0:1], 24", "s_load_dwordx2 s[52:53], s[0:1], 40", "s_load_dwordx4 s[4:7], s[0:1], 88")
    A.e("v_lshrrev_b32 v40, 6, v0", "s_nop 0", f"v_readfirstlane_b32 s{sW}, v40", "s_waitcnt lgkmcnt(0)")
    srd(A, SWS, sWSP, WS_BYTES); srd(A, SM0, 44, 8192); srd(A, SWQ, 46, 4 << 20); srd(A, SWK, 48, 4 << 20); srd(A, SWV, 50, 4 << 20); srd(A, SWO, 52, 4 << 20)
    A.e(f"s_mov_b32 s{sPOLL}, 0")
    election(A, end)
    chain_body(A, end, verbose)
    A.put(end)
    A.e("s_endpgm")
```

```python
from asmlib import *
from layout import *
from sched import *

DROP = set()
WARM = False
gWS = 8
gCUR, gNXT = 12, 16
gX = 20
gW, gRB, gHM, gHMN = 32, 33, 34, 35
gCO, gNO = 36, 37
gT0, gT1, gT2, gT3 = 38, 39, 40, 41
gDS, gM0 = 42, 43
gOUT = 44
gPQ, gPK, gPV = 46, 48, 50
gEND = 52
gFIRST = 53
gSTEP = 55
vDMA = 1
vTR = 2
vST = 10
vT = 12
vWF = 32
vACC = 64
vXF = 128

PROF = False
def stamp(A, k):
    if PROF:
        sk = A.label("st")
        A.e("s_memtime s[60:61]", "s_waitcnt lgkmcnt(0)", "s_cmp_lg_u32 s2, 0", f"s_cbranch_scc1 {sk}", f"s_cmp_lg_u32 s{gW}, 0", f"s_cbranch_scc1 {sk}",
            "v_mov_b32 v30, s60", f"s_add_u32 s62, s63, {4*k}" if isinstance(k, int) else "s_nop 0", "v_mov_b32 v31, s62", "global_store_dword v31, v30, s[4:5]")
        A.put(sk)

def nop(A, n):
    while n > 0:
        k = min(n, 16); A.e(f"s_nop {k-1}"); n -= k

def emit_sched(A, prog, verbose=False):
    lines, est, _, _ = schedule(prog, verbose=verbose)
    A.c(f"scheduled region: {len(prog)} instructions, model estimate {est} cycles")
    for l in lines: A.e(l)
    return est

def lane_setup(A, row_stride):
    A.e("v_and_b32 v11, 63, v0")
    A.e("v_lshrrev_b32 v12, 4, v11", "v_and_b32 v13, 15, v11", "v_lshlrev_b32 v14, 2, v12", "v_xor_b32 v13, v13, v14", "v_lshlrev_b32 v13, 4, v13",
        f"v_mul_u32_u24 v12, {row_stride}, v12", f"v_add_u32 v{vDMA}, v12, v13")
    A.e("v_lshrrev_b32 v12, 4, v11",
        "v_and_b32 v13, 15, v11", "v_lshrrev_b32 v13, 2, v13",
        "v_and_b32 v14, 3, v11",
        "v_lshrrev_b32 v15, 1, v12", "v_lshlrev_b32 v15, 3, v15", "v_add_u32 v15, v15, v13", "v_lshlrev_b32 v15, 8, v15",
        "v_and_b32 v16, 1, v12", "v_lshlrev_b32 v16, 1, v16", "v_lshrrev_b32 v17, 1, v14", "v_add_u32 v16, v16, v17",
        "v_and_b32 v17, 1, v14", "v_lshl_add_u32 v15, v17, 3, v15", "v_lshl_add_u32 v15, v16, 4, v15")
    for T in range(4):
        A.e(f"v_xor_b32 v16, {T}, v13", f"v_lshl_add_u32 v{vTR+T}, v16, 6, v15", f"v_add_u32 v{vTR+4+T}, 0x10000, v{vTR+T}")

L_STAGE = 131072
def x_issue(A, row_stride=1024):
    A.c("---- activations: coalesced loads (4 rows x 256 B per instruction), re-laid out through LDS afterwards")
    A.e("v_lshrrev_b32 v12, 4, v11", f"v_mul_u32_u24 v12, {row_stride}, v12", "v_and_b32 v13, 15, v11", "v_lshl_add_u32 v12, v13, 4, v12",
        f"s_mul_i32 s{gT1}, s{gW}, {32*row_stride}", f"s_add_u32 s{gT0}, s{gT0}, s{gT1}")
    for b in range(4):
        for n in range(8):
            A.e(f"buffer_load_dwordx4 {vr(vXF+32*b+4*n,4)}, v12, s[{gX}:{gX+3}], s{gT0} offen offset:{b*256}")
            A.e(f"s_add_u32 s{gT0}, s{gT0}, {4*row_stride}" if n < 7 else f"s_sub_u32 s{gT0}, s{gT0}, {28*row_stride}")

def x_issue_blocks(A, nb):
    A.e("v_lshlrev_b32 v12, 4, v11")
    for b in range(nb):
        for n in range(8):
            if n == 4: A.e(f"s_add_u32 s{gT0}, s{gT0}, 4096")
            A.e(f"buffer_load_dwordx4 {vr(vXF+32*b+4*n,4)}, v12, s[{gWS}:{gWS+3}], s{gT0} offen offset:{(n&3)*1024}")
        A.e(f"s_add_u32 s{gT0}, s{gT0}, 4096")

def load_x_blocks(A, nb, younger):
    stage_addrs(A)
    A.e(f"s_lshl_b32 s{gT1}, s{gW}, 13", f"s_add_u32 s{gT1}, s{gT1}, {L_STAGE}", "v_lshlrev_b32 v20, 4, v11", f"v_add_u32 v20, s{gT1}, v20")
    for b in range(nb):
        A.e(f"s_waitcnt vmcnt({min(63, younger + 8*(nb-1-b))})")
        for n in range(8):
            A.e(f"ds_write_b128 v20, {vr(vXF+32*b+4*n,4)} offset:{n*1024}")
        A.e("s_waitcnt lgkmcnt(0)")
        for kk in range(8):
            A.e(f"v_xor_b32 v{25+(kk&1)}, {32*kk}, v24", f"ds_read_b128 {vr(vXF+32*b+4*kk,4)}, v{25+(kk&1)}")
        A.e("s_waitcnt lgkmcnt(0)")

def stage_addrs(A):
    A.e(f"s_lshl_b32 s{gT1}, s{gW}, 13", f"s_add_u32 s{gT1}, s{gT1}, {L_STAGE}",
        "v_lshrrev_b32 v12, 4, v11", "v_and_b32 v13, 15, v11", "v_xor_b32 v13, v13, v12", "v_lshlrev_b32 v13, 4, v13", "v_lshl_add_u32 v13, v12, 8, v13",
        f"v_add_u32 v20, s{gT1}, v13")
    for k in range(1, 4): A.e(f"v_xor_b32 v{20+k}, {64*k}, v20")
    A.e("v_and_b32 v12, 31, v11", "v_and_b32 v13, 15, v11", "v_lshrrev_b32 v14, 5, v11", "v_xor_b32 v13, v13, v14", "v_lshlrev_b32 v13, 4, v13",
        "v_lshl_add_u32 v13, v12, 8, v13", f"v_add_u32 v24, s{gT1}, v13")

def load_x_ln(A, younger, eps_hex="0x3727c5ac", ln=True, mid=None):
    if ln and WARM:
        A.c("while the loads are in flight: one pass over the normalisation code with no lane enabled (instruction cache)")
        norm_lab, back_lab = A.label("norm"), A.label("norm_back")
        A.e("s_mov_b32 s65, 1", "s_mov_b32 s64, 0xffff0000", "s_mov_b64 exec, 0", f"s_branch {norm_lab}")
        A.put(back_lab)
    stage_addrs(A)
    G = vACC
    A.e("v_mov_b32 v13, 0x3f803f80")
    for k in range(4): A.e(f"v_mov_b32 v{vT+4+k}, 0")
    for b in range(4):
        A.e(f"s_waitcnt vmcnt({min(63, younger + 24 - 8*b)})")
        for n in range(8):
            A.e(f"ds_write_b128 v{20+(n&3)}, {vr(vXF+32*b+4*n,4)} offset:{n*1024}")
        A.e("s_waitcnt lgkmcnt(0)")
        for kk in range(8):
            A.e(f"v_xor_b32 v{25+(kk&1)}, {32*kk}, v24", f"ds_read_b128 {vr(vXF+32*b+4*kk,4)}, v{25+(kk&1)}")
        if ln:
            for kk in range(8):
                x = vXF + 32 * b + 4 * kk
                A.e(f"s_waitcnt lgkmcnt({7-kk})")
                A.e(f"v_mfma_f32_32x32x16_bf16 {vr(G,16)}, {vr(x,4)}, {vr(x,4)}, {'0' if b == 0 and kk == 0 else vr(G,16)}")
                for j in range(4): A.e(f"v_dot2_f32_bf16 v{vT+4+j}, v{x+j}, v13, v{vT+4+j}")
        else:
            A.e("s_waitcnt lgkmcnt(0)")
    stamp(A, 2)
    if mid: mid()
    stamp(A, 3)
    if not ln: return
    S, Q = vT + 4, vT + 8
    nop(A, 12)
    A.c("diagonal of the Gram matrix: token j = l&31 sits in lanes with l>>5 == (j>>2)&1, register (j&3) + 4*(j>>3)")
    for bit, sp in ((0, 64), (1, 66), (3, 68), (4, 70), (2, 72)):
        A.e(f"v_lshrrev_b32 v12, {bit}, v11", "v_and_b32 v12, 1, v12", f"v_cmp_eq_u32 s[{sp}:{sp+1}], 1, v12")
    A.e("s_nop 1")
    n = 16
    for sp in (64, 66, 68, 70):
        n //= 2
        for k in range(n): A.e(f"v_cndmask_b32 v{G+k}, v{G+2*k}, v{G+2*k+1}, s[{sp}:{sp+1}]")
    A.e(f"v_mov_b32 v{G+1}, v{G}", "s_nop 1", f"v_permlane32_swap_b32 v{G}, v{G+1}", "s_nop 1", f"v_cndmask_b32 v{Q}, v{G}, v{G+1}, s[72:73]")
    A.e(f"v_add_f32 v{S}, v{S}, v{S+1}", f"v_add_f32 v{S+2}, v{S+2}, v{S+3}", f"v_add_f32 v{S}, v{S}, v{S+2}")
    A.e(f"v_mov_b32 v{S+1}, v{S}", "s_nop 1", f"v_permlane32_swap_b32 v{S}, v{S+1}", "s_nop 1", f"v_add_f32 v{S}, v{S}, v{S+1}")
    A.e(f"v_mul_f32 v{S}, 0x3b000000, v{S}", f"v_mul_f32 v{Q}, 0x3b000000, v{Q}",
        f"v_fma_f32 v{Q}, -v{S}, v{S}, v{Q}", f"v_max_f32 v{Q}, 0, v{Q}", f"v_add_f32 v{Q}, {eps_hex}, v{Q}", f"v_rsq_f32 v{Q}, v{Q}", "s_nop 0",
        f"v_mul_f32 v{S}, v{S}, v{Q}")
    A.e(f"v_mov_b32 v28, v{Q}", f"v_mov_b32 v14, v{S}", "s_mov_b32 s64, 0xffff0000")
    if WARM:
        A.e("s_mov_b32 s65, 0"); A.put(norm_lab)
    for k in range(128):
        x = vXF + k; a = vT + 12 + (k & 1) * 2
        if "nopk" in DROP:
            A.e(f"v_lshlrev_b32 v{a}, 16, v{x}", f"v_and_b32 v{a+1}, s64, v{x}", f"v_fma_f32 v{a}, v{a}, v28, -v14", f"v_fma_f32 v{a+1}, v{a+1}, v28, -v14",
                f"v_cvt_pk_bf16_f32 v{x}, v{a}, v{a+1}")
        else:
            A.e(f"v_lshlrev_b32 v{a}, 16, v{x}", f"v_and_b32 v{a+1}, s64, v{x}",
                f"v_pk_fma_f32 v[{a}:{a+1}], v[{a}:{a+1}], v[28:29], v[14:15] op_sel_hi:[1,0,0] neg_lo:[0,0,1] neg_hi:[0,0,1]",
                f"v_cvt_pk_bf16_f32 v{x}, v{a}, v{a+1}")
    if WARM:
        A.e("s_mov_b64 exec, -1", "s_cmp_eq_u32 s65, 1", f"s_cbranch_scc1 {back_lab}")

def dma_issue_text(srd):
    return f"buffer_load_dwordx4 v{vDMA}, s[{srd}:{srd+3}], s{gDS} offen lds"

def chunk_prog(cc, w_is_a, row_stride, nch=4, cont=False):
    p = [BAR()]
    tc = cc + 3
    srd, col = (gCUR, gCO) if tc < nch else (gNXT, gNO)
    rows0 = 128 * (tc if tc < nch else tc - nch)
    p.append(SAL(f"s_lshl_b32 s{gDS}, s{gW}, 5", [f"s{gDS}"], [f"s{gW}"]))
    p.append(SAL(f"s_add_u32 s{gDS}, s{gDS}, {rows0}", [f"s{gDS}", "scc"], [f"s{gDS}"]))
    p.append(SAL(f"s_mul_i32 s{gDS}, s{gDS}, {row_stride}", [f"s{gDS}"], [f"s{gDS}"]))
    p.append(SAL(f"s_add_u32 s{gDS}, s{gDS}, s{col}", [f"s{gDS}", "scc"], [f"s{gDS}", f"s{col}"]))
    p.append(SAL(f"s_lshl_b32 s{gM0}, s{gW}, 13", [f"s{gM0}", "scc"], [f"s{gW}"]))
    p.append(SAL(f"s_add_u32 s{gM0}, s{gM0}, {(tc & 3) * 32768}", [f"s{gM0}", "scc"], [f"s{gM0}"]))
    def reads(kk):
        for T in range(4):
            for u in range(2):
                d = vWF + (kk & 1) * 16 + 4 * T + 2 * u
                ad = vTR + T + (4 if cc >= 2 else 0)
                p.append(DSR(f"ds_read_b64_tr_b16 {vr(d,2)}, v{ad} offset:{(cc & 1) * 32768 + kk * 4096 + u * 1024}", [vr(d,2)], [f"v{ad}"]))
    reads(0)
    for kk in range(8):
        if kk < 7: reads(kk + 1)
        p.append(SAL(f"s_mov_b32 m0, s{gM0}", ["m0"], [f"s{gM0}"]))
        if "dma" not in DROP:
            d = DMA(dma_issue_text(srd), [f"v{vDMA}", f"s{gDS}", "m0"], tag="afterbar"); p.append(d)
        if kk < 7:
            p.append(SAL(f"s_add_u32 s{gDS}, s{gDS}, {4 * row_stride}", [f"s{gDS}", "scc"], [f"s{gDS}"]))
            p.append(SAL(f"s_add_u32 s{gM0}, s{gM0}, 1024", [f"s{gM0}", "scc"], [f"s{gM0}"]))
        ks = cc * 8 + kk
        x = vr(vXF + 4 * ks, 4)
        for T in range(4):
            w = vr(vWF + (kk & 1) * 16 + 4 * T, 4); acc = vr(vACC + 16 * T, 16)
            first = (ks == 0) and not cont
            a, b = (w, x) if w_is_a else (x, w)
            p.append(MFMA8(f"v_mfma_f32_32x32x16_bf16 {acc}, {a}, {b}, {'0' if first else acc}", [acc], [w, x] + ([] if first else [acc]), first=first))
    return p

def block_body(A, w_is_a, row_stride, verbose=False, nch=4, cont=False, tail=True):
    import sched
    old = sched.VM_GAP, sched.VM_FIRST
    sched.VM_GAP, sched.VM_FIRST = 110, 40
    for cc in range(nch):
        if cc < 3:
            l16 = A.label("w16"); lj = A.label("wj")
            A.e(f"s_cmp_eq_u32 s{gFIRST}, 1", f"s_cbranch_scc1 {l16}", "s_waitcnt vmcnt(24)", f"s_branch {lj}")
            A.put(l16); A.e("s_waitcnt vmcnt(16)"); A.put(lj)
        else:
            A.e("s_waitcnt vmcnt(16)")
        emit_sched(A, chunk_prog(cc, w_is_a, row_stride, nch, cont), verbose)
    sched.VM_GAP, sched.VM_FIRST = old
    if tail: nop(A, 12)

def prologue_ring(A, row_stride):
    top = A.label("ring0"); inner = A.label("ring0i")
    A.e(f"s_mov_b32 s{gT2}, 0")
    A.put(top)
    A.e(f"s_lshl_b32 s{gDS}, s{gW}, 5", f"s_lshl_b32 s{gT3}, s{gT2}, 7", f"s_add_u32 s{gDS}, s{gDS}, s{gT3}", f"s_mul_i32 s{gDS}, s{gDS}, {row_stride}", f"s_add_u32 s{gDS}, s{gDS}, s{gCO}",
        f"s_lshl_b32 s{gM0}, s{gW}, 13", f"s_lshl_b32 s{gT3}, s{gT2}, 15", f"s_add_u32 s{gM0}, s{gM0}, s{gT3}", f"s_mov_b32 s{gT3}, 0")
    A.put(inner)
    A.e(f"s_mov_b32 m0, s{gM0}", f"s_add_u32 s{gT3}, s{gT3}, 1", dma_issue_text(gCUR),
        f"s_add_u32 s{gDS}, s{gDS}, {4*row_stride}", f"s_add_u32 s{gM0}, s{gM0}, 1024", f"s_cmp_lt_u32 s{gT3}, 8", f"s_cbranch_scc1 {inner}")
    A.e(f"s_add_u32 s{gT2}, s{gT2}, 1", f"s_cmp_lt_u32 s{gT2}, 3", f"s_cbranch_scc1 {top}")

def pack_rows(A, relu=False):
    out = []
    for T in range(4):
        for qp in range(2):
            base = vACC + 16 * T + 8 * qp
            if relu:
                for k in range(8): A.e(f"v_max_f32 v{base+k}, 0, v{base+k}")
            d = vWF + (len(out) % 4) * 4
            A.e(f"v_cvt_pk_bf16_f32 v{d}, v{base}, v{base+1}", f"v_cvt_pk_bf16_f32 v{d+1}, v{base+2}, v{base+3}",
                f"v_cvt_pk_bf16_f32 v{d+2}, v{base+4}, v{base+5}", f"v_cvt_pk_bf16_f32 v{d+3}, v{base+6}, v{base+7}", "s_nop 1",
                f"v_permlane32_swap_b32 v{d}, v{d+2}", f"v_permlane32_swap_b32 v{d+1}, v{d+3}")
            yield (T, 2 * qp, d)
            out.append(d)

def epilogue_stage(A, relu=False):
    stage_addrs(A)
    for T, qd, d in pack_rows(A, relu):
        A.e(f"v_xor_b32 v12, {(4*T+qd) << 4}, v24", f"ds_write_b128 v12, {vr(d,4)}")

def epilogue_rows(A, sc=""):
    A.e(f"s_lshl_b32 s{gT1}, s{gW}, 13", f"s_add_u32 s{gT1}, s{gT1}, {L_STAGE}", "v_lshlrev_b32 v13, 4, v11", f"v_add_u32 v12, s{gT1}, v13", "s_waitcnt lgkmcnt(0)")
    for n in range(8): A.e(f"ds_read_b128 {vr(vACC+4*n,4)}, v12 offset:{n*1024}")
    A.e(f"s_add_u32 s{gT0}, s{gOUT}, 4096")
    for n in range(8):
        A.e(f"s_waitcnt lgkmcnt({7-n})", f"buffer_store_dwordx4 {vr(vACC+4*n,4)}, v13, s[{gWS}:{gWS+3}], s{gOUT if n < 4 else gT0} offen offset:{(n&3)*1024}{sc}")

def epilogue_vt(A, sc=""):
    A.e(f"s_lshl_b32 s{gT1}, s{gW}, 13", f"s_add_u32 s{gT1}, s{gT1}, {L_STAGE}",
        "v_lshrrev_b32 v12, 4, v11", "v_and_b32 v13, 15, v11", "v_lshrrev_b32 v14, 2, v13", "v_lshl_add_u32 v14, v12, 2, v14",
        "v_and_b32 v13, 3, v11", "v_lshrrev_b32 v15, 1, v13", "v_xor_b32 v15, v15, v14", "v_lshlrev_b32 v15, 4, v15",
        "v_and_b32 v13, 1, v13", "v_lshl_add_u32 v15, v13, 3, v15", "v_lshl_add_u32 v15, v14, 8, v15", f"v_add_u32 v15, s{gT1}, v15",
        "v_lshlrev_b32 v13, 4, v11", "s_waitcnt lgkmcnt(0)")
    for dt in range(8):
        A.e(f"v_xor_b32 v{16+(dt&1)}, {32*dt}, v15",
            f"ds_read_b64_tr_b16 {vr(vACC+4*dt,2)}, v{16+(dt&1)}", f"ds_read_b64_tr_b16 {vr(vACC+4*dt+2,2)}, v{16+(dt&1)} offset:4096")
    A.e(f"s_add_u32 s{gT0}, s{gOUT}, 4096")
    for dt in range(8):
        A.e(f"s_waitcnt lgkmcnt({min(15, 14-2*dt)})", f"buffer_store_dwordx4 {vr(vACC+4*dt,4)}, v13, s[{gWS}:{gWS+3}], s{gOUT if dt < 4 else gT0} offen offset:{(dt&3)*1024}{sc}")

def set_desc(A, srd, col, hm):
    A.e(f"s_lshr_b32 s{gT0}, s{hm}, 5", f"s_and_b32 s{col}, s{hm}, 31", f"s_lshl_b32 s{col}, s{col}, 8",
        f"s_cmp_eq_u32 s{gT0}, 0", f"s_cselect_b32 s{srd}, s{gPK}, s{gPV}", f"s_cselect_b32 s{srd+1}, s{gPK+1}, s{gPV+1}",
        f"s_cmp_eq_u32 s{gT0}, 2", f"s_cselect_b32 s{srd}, s{gPQ}, s{srd}", f"s_cselect_b32 s{srd+1}, s{gPQ+1}, s{srd+1}",
        f"s_and_b32 s{srd+1}, s{srd+1}, 0xffff",
        f"s_cmp_lt_u32 s{hm}, 96", f"s_cselect_b32 s{srd+2}, 0x400000, 0", f"s_mov_b32 s{srd+3}, 0x20000")

def l2_prefetch(A, step, nblk):
    A.c("---- cooperative L2 prefetch of the weight blocks of this column group")
    nopf = A.label("nopf")
    A.e(f"s_cmp_eq_u32 s{gSTEP}, 96", f"s_cbranch_scc1 {nopf}")
    A.e("v_lshrrev_b32 v12, 4, v11", "v_mul_u32_u24 v12, 8192, v12", "v_and_b32 v13, 15, v11", "v_lshl_add_u32 v12, v13, 4, v12",
        f"s_mov_b32 s{gT3}, s{gHM}")
    for i in range(nblk):
        set_desc(A, gNXT, gNO, gT3)
        A.e(f"s_lshl_b32 s{gT1}, s{gRB}, 5", f"s_lshl_b32 s{gT2}, s{gW}, 3", f"s_add_u32 s{gT1}, s{gT1}, s{gT2}", f"s_lshl_b32 s{gT1}, s{gT1}, 13",
            f"s_add_u32 s{gT1}, s{gT1}, s{gNO}")
        A.e(f"buffer_load_dwordx4 v[32:35], v12, s[{gNXT}:{gNXT+3}], s{gT1} offen", f"s_add_u32 s{gT1}, s{gT1}, 0x8000",
            f"buffer_load_dwordx4 v[32:35], v12, s[{gNXT}:{gNXT+3}], s{gT1} offen", f"s_add_u32 s{gT3}, s{gT3}, s{gSTEP}")
    A.put(nopf)

gSIG = 54
def signal_kv(A, off):
    sk = A.label("sig")
    A.e(f"s_cmp_eq_u32 s{gSIG}, 0", f"s_cbranch_scc1 {sk}", f"s_cmp_lg_u32 s{gW}, 0", f"s_cbranch_scc1 {sk}")
    A.e(f"s_lshl_b32 s{gT0}, s{gRB}, 2", f"s_add_u32 s{gT0}, s{gT0}, {off}", "s_mov_b64 exec, 1", f"v_mov_b32 v12, s{gT0}", f"v_mov_b32 v13, s{gSIG}",
        "global_atomic_add v12, v13, s[4:5]", "s_mov_b64 exec, -1")
    A.put(sk)
    A.e(f"s_mov_b32 s{gSIG}, 0")

def t1_body(A, step, sc="", verbose=False, signal=None):
    RSTR = 8192
    if step is not None: A.e(f"s_mov_b32 s{gSTEP}, {step}")
    if PROF: A.e("s_mov_b32 s63, 0")
    stamp(A, 0)
    A.e("v_mbcnt_lo_u32_b32 v0, -1, 0", "v_mbcnt_hi_u32_b32 v0, -1, v0", f"s_mov_b32 s{gSIG}, 0")
    lane_setup(A, RSTR)
    A.e(f"s_lshl_b32 s{gT0}, s{gRB}, 17")
    x_issue(A)
    set_desc(A, gCUR, gCO, gHM)
    prologue_ring(A, RSTR)
    stamp(A, 1)
    npf = 0
    load_x_ln(A, 24, mid=(lambda: l2_prefetch(A, step, 7)) if "pf" not in DROP else None)
    A.e("s_waitcnt vmcnt(0)")
    A.e(f"s_add_u32 s{gHMN}, s{gHM}, s{gSTEP}")
    set_desc(A, gNXT, gNO, gHMN)
    A.e(f"s_mov_b32 s{gFIRST}, 1")
    stamp(A, 4)
    if PROF: A.e("s_mov_b32 s63, 20")
    loop = A.label("t1_loop"); isv = A.label("t1_v"); isq = A.label("t1_q"); nxt = A.label("t1_next"); done = A.label("t1_done")
    A.put(loop)
    A.e(f"s_lshl_b32 s{gT0}, s{gRB}, 2", f"s_add_u32 s{gT0}, s{gT0}, s{gW}", f"s_lshl_b32 s{gT0}, s{gT0}, 5", f"s_and_b32 s{gT1}, s{gHM}, 31",
        f"s_add_u32 s{gT0}, s{gT0}, s{gT1}", f"s_lshl_b32 s{gOUT}, s{gT0}, 13", f"s_lshr_b32 s{gT2}, s{gHM}, 5")
    block_body(A, True, RSTR, verbose)
    if signal is not None: signal_kv(A, signal)
    epilogue_stage(A)
    A.e(f"s_lshr_b32 s{gT2}, s{gHM}, 5", f"s_cmp_eq_u32 s{gT2}, 1", f"s_cbranch_scc1 {isv}")
    A.e(f"s_cmp_eq_u32 s{gT2}, 0", f"s_cselect_b32 s{gT2}, {KB:#x}, {QB:#x}", f"s_add_u32 s{gOUT}, s{gOUT}, s{gT2}")
    if "st" not in DROP: epilogue_rows(A, sc)
    A.e(f"s_branch {nxt}")
    A.put(isv)
    A.e(f"s_add_u32 s{gOUT}, s{gOUT}, {VT:#x}")
    if "st" not in DROP: epilogue_vt(A, sc)
    A.put(nxt)
    stamp(A, 0)
    if PROF: A.e("s_add_u32 s63, s63, 4")
    A.e(f"s_mov_b32 s{gFIRST}, 0", f"s_cmp_lt_u32 s{gHM}, 64", f"s_cselect_b32 s{gSIG}, 1, 0x10000")
    for k in range(4): A.e(f"s_mov_b32 s{gCUR+k}, s{gNXT+k}")
    A.e(f"s_mov_b32 s{gCO}, s{gNO}", f"s_mov_b32 s{gHM}, s{gHMN}", f"s_add_u32 s{gHMN}, s{gHMN}, s{gSTEP}")
    set_desc(A, gNXT, gNO, gHMN)
    A.e(f"s_cmp_lt_u32 s{gHM}, 96", f"s_cbranch_scc1 {loop}")
    A.e("s_waitcnt vmcnt(0)", "s_barrier")
    if signal is not None: signal_kv(A, signal)

def gen_t1_kernel(A, name, verbose=False):
    kernel_header(A, name)
    end = A.label("end")
    A.e("s_cmp_ge_u32 s2, 256", f"s_cbranch_scc1 {end}")
    A.e("s_load_dwordx2 s[22:23], s[0:1], 0", f"s_load_dwordx4 s[24:27], s[0:1], 16", f"s_load_dwordx2 s[28:29], s[0:1], 32", "s_load_dwordx4 s[4:7], s[0:1], 88")
    A.e("v_lshrrev_b32 v12, 6, v0", "s_nop 0", f"v_readfirstlane_b32 s{gW}, v12", "s_waitcnt lgkmcnt(0)")
    A.e(f"s_mov_b32 s{gPQ}, s24", f"s_mov_b32 s{gPQ+1}, s25", f"s_mov_b32 s{gPK}, s26", f"s_mov_b32 s{gPK+1}, s27", f"s_mov_b32 s{gPV}, s28", f"s_mov_b32 s{gPV+1}, s29")
    srd(A, gWS, 6, WS_BYTES); srd(A, gX, 22, 2 << 20)
    A.e(f"s_lshr_b32 s{gT0}, s2, 3", f"s_and_b32 s{gRB}, s{gT0}, 15", f"s_lshr_b32 s{gT0}, s{gT0}, 4", f"s_lshl_b32 s{gT0}, s{gT0}, 3",
        f"s_and_b32 s{gHM}, s2, 7", f"s_add_u32 s{gHM}, s{gHM}, s{gT0}", f"s_cmp_ge_u32 s{gHM}, 14", f"s_cbranch_scc1 {end}")
    t1_body(A, 14, verbose=verbose)
    A.put(end)
    A.e("s_endpgm")
```

```python
QB   = 0x00000000
KB   = 0x01000000
VT   = 0x02000000
KV   = 0x03000000
RS   = 0x04000000
AG   = 0x04100000
DUMMY = 0x04180000
OB   = 0x05000000
HB   = 0x06000000
FB   = 0x06200000
P1   = 0x07000000
P2   = 0x07800000
Q1   = 0x08000000
HN   = 0x09000000
Q2   = 0x09400000
FLG  = 0x0A000000
WS_BYTES = 0x10000000
L_WO = 0
L_KX = 131072
L_MB = 147456
L_Q  = 155648
L_K  = 159744
LDS_BYTES = 163840
```

```python
from asmlib import *
from layout import *
import chain as C1, chain3 as C3, gemm as G, t2 as T2
TAIL = False
TEST_MODE = None
CODEPF = False
NOWORK = False

D_TICK = 0
D_KV = 128
D_WIN, D_SLOW, D_BAR, D_SURP = 192, 196, 200, 204
sW = 32
sROLE, sMODE, sXR, sTK = 33, 34, 35, 36
sA, sB, sCc, sD = 58, 59, 60, 61

def election(A):
    A.c("---- role assignment")
    skip = A.label("el_skip"); done = A.label("el_done"); surp = A.label("el_surp"); work = A.label("el_work")
    DB = "s[4:5]"
    A.e(f"s_cmp_lg_u32 s{sW}, 0", f"s_cbranch_scc1 {skip}")
    A.e(f"s_getreg_b32 s{sA}, hwreg(HW_REG_XCC_ID)", f"s_and_b32 s{sA}, s{sA}, 15")
    if TEST_MODE == "surplus": A.e(f"s_lshr_b32 s{sA}, s{sA}, 1")
    if TEST_MODE == "slow": A.e(f"s_add_u32 s{sA}, s{sA}, 1", f"s_and_b32 s{sA}, s{sA}, 7", f"s_max_u32 s{sA}, s{sA}, 1")
    A.e(f"s_min_u32 s{sA}, s{sA}, 7")
    A.e("s_mov_b64 exec, 1", "v_mov_b32 v41, 1", "v_mov_b32 v44, 0", f"s_lshl_b32 s{sB}, s{sA}, 4", f"v_mov_b32 v40, s{sB}")
    A.e(f"global_atomic_add v42, v40, v41, {DB} sc0", f"s_mov_b32 s{sROLE}, -1", f"s_mov_b32 s{sXR}, -1", "s_waitcnt vmcnt(0)", "s_nop 0", f"v_readfirstlane_b32 s{sTK}, v42", "s_nop 3")
    A.e(f"s_cmp_ge_u32 s{sTK}, 32", f"s_cbranch_scc1 {surp}")
    A.e(f"s_cmp_lg_u32 s{sA}, 0", f"s_cbranch_scc1 {work}", f"s_mov_b32 s{sROLE}, s{sTK}", f"s_branch {done}")
    A.put(work)
    A.e(f"s_sub_u32 s{sXR}, s{sA}, 1", f"s_branch {done}")
    A.put(surp)
    wait = A.label("el_swait"); scan = A.label("el_sscan"); nof = A.label("el_snone")
    A.e(f"global_atomic_add v42, v44, v41, {DB} offset:{D_SURP} sc0", "s_waitcnt vmcnt(0)", "s_nop 0", f"v_readfirstlane_b32 s83, v42", "s_nop 3")
    A.e("s_mov_b64 exec, 0xff", "v_mbcnt_lo_u32_b32 v40, -1, 0", "v_lshlrev_b32 v40, 4, v40", f"s_mov_b32 s{sD}, 0")
    A.put(wait)
    A.e(f"global_load_dword v42, v40, {DB} sc1", "s_waitcnt vmcnt(0)", f"s_mov_b32 s84, 0")
    for x in range(8): A.e(f"v_readlane_b32 s{86+x}, v42, {x}")
    A.e("s_nop 3")
    for x in range(8): A.e(f"s_add_u32 s84, s84, s{86+x}")
    A.e("s_cmp_ge_u32 s84, 256", f"s_cbranch_scc1 {scan}", f"s_add_u32 s{sD}, s{sD}, 1", f"s_cmp_lt_u32 s{sD}, 0x100000", f"s_cbranch_scc0 {nof}", "s_sleep 8", f"s_branch {wait}")
    A.put(scan)
    for x in range(8):
        nxx = A.label("el_x")
        A.e(f"s_min_u32 s84, s{86+x}, 32", f"s_sub_u32 s85, 32, s84", "s_cmp_lt_u32 s83, s85", f"s_cbranch_scc0 {nxx}", f"s_add_u32 s{sTK}, s84, s83")
        if x == 0: A.e(f"s_mov_b32 s{sROLE}, s{sTK}")
        else: A.e(f"s_mov_b32 s{sXR}, {x-1}")
        A.e(f"s_branch {nof}")
        A.put(nxx)
        A.e("s_sub_u32 s83, s83, s85")
    A.put(nof)
    A.e("s_mov_b64 exec, 1")
    A.put(done)
    A.e(f"v_mov_b32 v40, s{sROLE}", f"v_mov_b32 v42, s{sXR}", f"v_mov_b32 v43, s{sTK}", "v_mov_b32 v44, 0",
        "ds_write_b128 v44, v[40:43]", "s_waitcnt lgkmcnt(0)", "s_mov_b64 exec, -1")
    A.put(skip)
    A.e("s_barrier", "v_mov_b32 v44, 0", "ds_read_b128 v[40:43], v44", "s_waitcnt lgkmcnt(0)", "s_nop 0")
    A.e(f"v_readfirstlane_b32 s{sROLE}, v40", f"v_readfirstlane_b32 s{sXR}, v42", f"v_readfirstlane_b32 s{sTK}, v43", "s_nop 3")
    A.e("s_barrier")

THROTTLE = 0
def worker(A, end):
    A.c("==== worker role: task (xr, t) -> row block t&15, column class xr + 7*(t>>4)")
    A.e(f"s_cmp_eq_u32 s{sXR}, -1", f"s_cbranch_scc1 {end}")
    if NOWORK: A.e(f"s_branch {end}")
    A.e("s_load_dwordx2 s[22:23], s[0:1], 0", "s_load_dwordx4 s[24:27], s[0:1], 16", "s_load_dwordx2 s[28:29], s[0:1], 32", "s_waitcnt lgkmcnt(0)")
    A.e(f"s_mov_b32 s{G.gPQ}, s24", f"s_mov_b32 s{G.gPQ+1}, s25", f"s_mov_b32 s{G.gPK}, s26", f"s_mov_b32 s{G.gPK+1}, s27", f"s_mov_b32 s{G.gPV}, s28", f"s_mov_b32 s{G.gPV+1}, s29")
    srd(A, G.gWS, 6, WS_BYTES); srd(A, G.gX, 22, 2 << 20)
    A.e(f"s_lshr_b32 s80, s{sTK}, 4", "s_mul_i32 s80, s80, 7", f"s_add_u32 s80, s80, s{sXR}", f"s_and_b32 s81, s{sTK}, 15")
    A.e(f"s_lshl_b32 s84, s{sXR}, 5", f"s_add_u32 s84, s84, s{sTK}")
    start = A.label("wk_start"); regular = A.label("wk_reg"); noskip = A.label("wk_noskip")
    A.e("s_mov_b32 s82, 1", "s_cmp_lt_u32 s81, 6", f"s_cbranch_scc1 {regular}")
    A.e("s_sub_u32 s83, s81, 6", "s_mul_i32 s83, s83, 14", "s_add_u32 s83, s83, s80", "s_cmp_ge_u32 s83, 128", f"s_cbranch_scc1 {regular}")
    A.e("s_mov_b32 s82, 0", f"s_and_b32 s{G.gRB}, s83, 1", f"s_lshr_b32 s{G.gHM}, s83, 1", f"s_mov_b32 s{G.gSTEP}, 96", f"s_branch {start}")
    A.put(regular)
    if THROTTLE:
        A.c("the bulk of the projection work starts once the chain's weight stream is under way (it shares the memory system with it)")
        top = A.label("thr"); ok = A.label("thr_ok")
        A.e(f"s_cmp_lg_u32 s{sW}, 0", f"s_cbranch_scc1 {ok}", "s_mov_b32 s83, 0")
        A.put(top)
        A.e("v_mov_b32 v40, 0", f"global_load_dword v41, v40, s[4:5] offset:{THROTTLE} sc1", "s_waitcnt vmcnt(0)", "s_nop 0", "v_readfirstlane_b32 s85, v41", "s_nop 3",
            "s_cmp_ge_u32 s85, 32", f"s_cbranch_scc1 {ok}", "s_add_u32 s83, s83, 1", "s_cmp_lt_u32 s83, 0x10000", f"s_cbranch_scc0 {ok}", "s_sleep 16", f"s_branch {top}")
        A.put(ok)
        A.e("s_barrier")
    A.e("s_mov_b32 s82, 1", f"s_mov_b32 s{G.gRB}, s81", f"s_mov_b32 s{G.gHM}, s80", f"s_mov_b32 s{G.gSTEP}, 14")
    if EARLY:
        A.e("s_cmp_ge_u32 s81, 2", f"s_cbranch_scc1 {start}")
        sk = A.label("wk_skip")
        A.put(sk)
        A.e(f"s_cmp_ge_u32 s{G.gHM}, 64", f"s_cbranch_scc1 {start}", f"s_add_u32 s{G.gHM}, s{G.gHM}, 14", f"s_branch {sk}")
    A.put(start)
    G.t1_body(A, None, sc=" sc1", signal=D_KV)
    A.e("s_cmp_eq_u32 s82, 0", f"s_cbranch_scc1 {regular}")
    if C1.TOTAL:
        sk = A.label("t1e")
        A.e("s_memrealtime s[96:97]", "s_waitcnt lgkmcnt(0)", f"s_cmp_lg_u32 s{sW}, 0", f"s_cbranch_scc1 {sk}",
            "v_mov_b32 v40, 0x04182018", "v_mov_b32 v41, s96", "s_mov_b64 exec, 1", "global_atomic_umax v40, v41, s[6:7]", "s_mov_b64 exec, -1")
        A.put(sk)
    if TAIL: T2.tail_dispatch(A, end, 84)

EARLY = True
def gen_main(A, name, verbose=False):
    kernel_header(A, name)
    end = A.label("end"); wk = A.label("worker")
    A.e("s_cmp_ge_u32 s2, 256", f"s_cbranch_scc1 {end}")
    A.e("s_load_dwordx4 s[4:7], s[0:1], 88", "v_lshrrev_b32 v40, 6, v0", "s_nop 0", f"v_readfirstlane_b32 s{sW}, v40", "s_waitcnt lgkmcnt(0)")
    if C1.TOTAL:
        sk = A.label("t0")
        A.e("s_memrealtime s[96:97]", "s_waitcnt lgkmcnt(0)", "s_cmp_lg_u32 s2, 0", f"s_cbranch_scc1 {sk}", f"s_cmp_lg_u32 s{sW}, 0", f"s_cbranch_scc1 {sk}",
            "v_mov_b32 v40, 0x04182000", "v_mov_b32 v41, s96", "global_store_dword v40, v41, s[6:7]")
        if C3.DBGSTAMP: A.e("v_mov_b32 v40, 8", "global_store_dword v40, v41, s[4:5]")
        A.put(sk)
    if CODEPF:
        A.c("pull this kernel's code into the L2 of the die (one word per 64-byte line, values unused)")
        here = A.label("pc"); top = A.label("cpf")
        A.e("s_getpc_b64 s[70:71]")
        A.put(here)
        A.e(f"s_cmp_lg_u32 s{sW}, 1", f"s_cbranch_scc1 {top}_done", "v_and_b32 v101, 63, v0", "v_lshlrev_b32 v101, 6, v101", f"s_mov_b32 s72, ({end} - {here}) / 4096")
        A.put(top)
        A.e("global_load_dword v100, v101, s[70:71]", "v_add_u32 v101, 0x1000, v101", "s_sub_u32 s72, s72, 1", "s_cmp_lg_u32 s72, 0", f"s_cbranch_scc1 {top}")
        A.put(f"{top}_done")
    election(A)
    A.e(f"s_cmp_eq_u32 s{sROLE}, -1", f"s_cbranch_scc1 {wk}")
    A.c("==== chain role")
    C3.chain_role(A, end, verbose)
    A.put(wk)
    worker(A, end)
    A.put(end)
    A.e("s_endpgm")
```

```python
import re

def regs(spec):
    out = set()
    for tok in spec:
        m = re.fullmatch(r"([vas])\[(\d+):(\d+)\]", tok)
        if m:
            out |= {f"{m.group(1)}{k}" for k in range(int(m.group(2)), int(m.group(3)) + 1)}
        else:
            out.add(tok)
    return out

class I:
    __slots__ = ("text", "kind", "rd", "wr", "prio", "idx", "preds", "succs", "height", "t", "slot", "tl", "done", "dsseq", "tag", "extra")
    def __init__(self, text, kind, wr=(), rd=(), prio=0, tag=None):
        self.text, self.kind = text, kind
        self.wr, self.rd = regs(wr), regs(rd)
        self.prio, self.tag = prio, tag
        self.preds, self.succs = [], []
        self.extra = []

ISSUE = dict(valu=4, trans=8, salu=4, dsr=4, dsw=8, dsw128=14, vml=6, vms=6, dma=16, mfma=8, smf=12, mfma8=8, bar=4, perm=4)
PIPE = dict(mfma=16, smf=16, mfma8=32)
DS_LAT = 100
DS_BASE = 72
DS_MODEL = True
def ds_service(text):
    op = text.split()[0]
    return {"ds_read_b128": 16, "ds_read_b64_tr_b16": 8, "ds_write_b128": 32, "ds_write_b32": 8, "ds_write2_b32": 16, "ds_write_b64": 16}.get(op, 8)
BAR_LAT = 24
VM_GAP = 64
SLACK = 60
OCC = dict(smf=12, mfma=8, mfma8=8, trans=8)
WEIGHTED = True
VM_FIRST = 24
MF = ("mfma", "smf", "mfma8")
VAL = ("valu", "trans", "perm")

def edge_req(p, c, kind):
    if p.tag == "mark": return (4, 0)
    if c.tag == "fix" and p.kind in MF: return (4, 0)
    if p.tag == "fix": return (4, 0)
    far = (68, 12) if p.kind == "mfma8" else (36, 8)
    if kind == "RAW":
        if p.kind in MF:
            if c.kind in MF and c.acc_chain(p): return (PIPE[p.kind], 0)
            return far
        if p.kind in VAL:
            if c.kind in MF: return (8, 2)
            if c.kind == "perm": return (8, 2)
            if p.kind == "trans": return (12, 1)
            if c.kind == "salu": return (8, 1)
            if any(r.startswith("s") or r == "vcc" for r in p.wr & c.rd):
                return (12, 5 if c.kind in ("vml", "vms", "dma") else 2)
            return (4, 0)
        if p.kind == "dsr": return (DS_LAT, 0)
        if p.kind == "vml": return (600, 0)
        if p.kind == "salu":
            if "m0" in p.wr and c.kind == "dma": return (8, 1)
            return (4, 0)
        return (4, 0)
    if kind == "WAW":
        if p.kind in MF:
            if c.kind in MF and c.acc_chain(p): return (PIPE[p.kind], 0)
            return far
        if p.kind == "dsr": return (DS_LAT, 0)
        if p.kind == "vml": return (600, 0)
        if p.kind in VAL and c.kind in MF: return (8, 2)
        return (4, 0)
    if kind == "WAR":
        if p.kind in MF and c.kind in VAL:
            if p.wr & c.wr: return far
            return (4, 0)
        if p.kind == "vms" and c.kind in VAL: return (8, 2)
        return (4, 0)
    return (4, 0)

def _chain(self, p):
    return p.text.split()[0] == self.text.split()[0] and p.wr == self.wr and p.kind in MF and self.kind in MF and not (p.wr & (self.rd - self.wr)) and self.tag != "noacc"
I.acc_chain = _chain

HOIST = True
def hoist_waits(lines):
    out = list(lines)
    for k in range(len(out)):
        m = re.fullmatch(r"s_waitcnt lgkmcnt\((\d+)\)", out[k].strip())
        if not m: continue
        n = int(m.group(1)); j = k
        while j > 0:
            prev = out[j-1].strip()
            if prev.startswith("ds_read"):
                if n == 0: break
                n -= 1; j -= 1
            elif prev.startswith(("v_mfma", "v_smfmac")):
                break
            else:
                j = k; break
        if j < k and j > 0 and out[j-1].strip().startswith(("v_mfma", "v_smfmac")):
            del out[k]
            out.insert(j, f"s_waitcnt lgkmcnt({n})")
    return out

def schedule(prog, ds_out=0, verbose=False):
    n = len(prog)
    lastw, readers = {}, {}
    last_ds = last_vm = last_bar = last_mf = None
    ds_since_bar = []
    for k, c in enumerate(prog):
        c.idx = k; c.preds = []; c.succs = []
    def dep(p, c, cyc, slots):
        c.preds.append((p, cyc, slots)); p.succs.append((c, cyc, slots))
    for c in prog:
        for r in c.rd:
            if r in lastw: dep(lastw[r], c, *edge_req(lastw[r], c, "RAW"))
        for r in c.wr:
            if r in lastw: dep(lastw[r], c, *edge_req(lastw[r], c, "WAW"))
            for p in readers.get(r, []):
                if p is not c: dep(p, c, *edge_req(p, c, "WAR"))
        for r in c.rd: readers.setdefault(r, []).append(c)
        for r in c.wr:
            lastw[r] = c; readers[r] = [c] if r in c.rd else []
        if c.kind.startswith("ds"):
            if last_ds is not None: dep(last_ds, c, 4, 0)
            if last_bar is not None: dep(last_bar, c, BAR_LAT, 0)
            last_ds = c; ds_since_bar.append(c)
        if c.kind in ("vml", "vms", "dma"):
            if last_vm is not None: dep(last_vm, c, VM_GAP if c.tag == "afterbar" else 4, 0)
            if c.tag == "afterbar" and last_bar is not None: dep(last_bar, c, VM_FIRST, 0)
            last_vm = c
        if c.kind in MF:
            if last_mf is not None: dep(last_mf, c, 4 if (c.tag == "mark" or last_mf.tag == "mark") else PIPE[last_mf.kind], 0)
            last_mf = c
        if c.kind == "bar":
            for p in ds_since_bar:
                dep(p, c, 70 if p.kind.startswith("dsw") else (DS_LAT if p.tag == "prebar" else 4), 0)
            if last_bar is not None: dep(last_bar, c, BAR_LAT, 0)
            last_bar = c; ds_since_bar = []; last_ds = None
    for c in reversed(prog):
        c.height = max([cyc + s.height for s, cyc, _ in c.succs], default=0) + ISSUE[c.kind] + c.prio
    done, out = set(), []
    t = 0; tv = 0; mf_free = 0; slot = 0; mfl = 0
    npred = {id(c): len(c.preds) for c in prog}
    ready = [c for c in prog if not c.preds]
    ds_issued = []
    ds_known = -1
    lines = []
    tl = 0; tvl = 0
    def emit(text, cyc, states=1, vec=None):
        nonlocal t, slot, tl, tvl
        lines.append(text); t += cyc; slot += states
        if vec is None:
            at = tl; tl += 4 * states
        else:
            at = max(tl, tvl); tl = at + 4; tvl = at + OCC.get(vec, 4)
        return at
    def mf_far(p_, s_):
        return WEIGHTED and p_.kind in MF and p_.tag != "mark" and s_ >= 8
    while ready:
        def earliest(c):
            tt = t
            for p, cyc, _ in c.preds:
                if DS_MODEL and p.kind.startswith("ds") and ((p.kind == "dsr" and p.wr & (c.rd | c.wr)) or (c.kind == "bar" and p.kind.startswith("dsw"))):
                    tt = max(tt, p.done)
                else:
                    tt = max(tt, p.t + cyc)
            if c.kind in MF: tt = max(tt, mf_free)
            if not (c.kind in ("salu", "bar") or c.tag == "mark"): tt = max(tt, tv)
            if c.kind.startswith("ds") and len(ds_issued) >= 15: tt = max(tt, ds_issued[-15].done if DS_MODEL else ds_issued[-15].t + DS_LAT)
            return tt
        def slot_gap(c):
            g = 0
            for p, _, s_ in c.preds:
                if mf_far(p, s_):
                    need = p.tl + 4 * (s_ + 1)
                    at = tl if c.kind in ("salu", "bar") else max(tl, tvl)
                    if c.kind in MF and c.tag != "mark": at = max(at, mfl)
                    if need > at: g = max(g, (need - tl + 3) // 4)
                else:
                    g = max(g, s_ - (slot - p.slot - 1))
            return g
        cand = sorted(ready, key=lambda c: (max(earliest(c) - t, 0) + 4 * max(slot_gap(c), 0) > 3, -c.height, c.idx))
        avail = [c for c in cand if earliest(c) - t <= 3 and slot_gap(c) <= 0]
        avail.sort(key=lambda c: (-(c.height), c.idx))
        top = max(ready, key=lambda c: (c.height, -c.idx))
        if avail:
            c = avail[0]
            if top not in avail and c.kind in MF and c.tag != "mark" and slot_gap(top) > 0 and earliest(top) - t <= 4 * slot_gap(top) + 4 and top.height - c.height > SLACK:
                cheap = [x for x in avail if x.kind not in MF]
                c = cheap[0] if cheap else top
        else:
            c = min(ready, key=lambda c: (max(earliest(c) - t, 4 * max(slot_gap(c), 0)), -c.height, c.idx))
        need = -1
        for p, _, _ in c.preds:
            if p.kind == "dsr" and (p.wr & (c.rd | c.wr)): need = max(need, p.dsseq)
            if c.kind == "bar" and (p.kind.startswith("dsw") or p.tag == "prebar"): need = max(need, p.dsseq)
        g = slot_gap(c)
        waited = False
        if need > ds_known:
            cnt = len(ds_issued) - 1 - need
            if cnt > 15: cnt = 15; need = len(ds_issued) - 1 - 15
            emit(f"s_waitcnt lgkmcnt({cnt})", 4); ds_known = need; waited = True
            g = slot_gap(c)
        if g > 0:
            while g > 0:
                k_ = min(g, 16); emit(f"s_nop {k_-1}", 4 * k_, k_); g -= k_
        te = earliest(c)
        if te > t: t = te
        c.t, c.slot = t, slot
        if c.kind.startswith("ds"):
            c.done = max(c.t + DS_BASE, (ds_issued[-1].done if ds_issued else 0) + ds_service(c.text))
            c.dsseq = len(ds_issued); ds_issued.append(c)
        if c.kind in MF and c.tag != "mark": mf_free = t + PIPE[c.kind]
        scalar = c.kind in ("salu", "bar") or c.tag == "mark"
        if c.kind in MF and c.tag != "mark" and mfl > tl: tl = mfl
        if not scalar: tv = t + ISSUE[c.kind]
        c.tl = emit(c.text, 4, 1, None if scalar else c.kind)
        if c.kind in MF and c.tag != "mark": mfl = c.tl + PIPE[c.kind]
        if verbose: lines[-1] += f"    ; t={c.t}"
        ready.remove(c)
        for s, _, _ in c.succs:
            npred[id(s)] -= 1
            if npred[id(s)] == 0: ready.append(s)
    if HOIST: lines = hoist_waits(lines)
    return lines, t, ds_issued, ds_known

def V(text, wr, rd, prio=0): return I(text, "valu", wr, rd, prio)
def TRN(text, wr, rd, prio=0): return I(text, "trans", wr, rd, prio)
def PERM(text, wr, rd): return I(text, "perm", wr, rd)
def SAL(text, wr, rd=(), prio=0): return I(text, "salu", wr, rd, prio)
def MFMA(text, wr, rd, first=False, prio=0): return I(text, "mfma", wr, rd, prio, tag="noacc" if first else None)
def SMF(text, wr, rd, prio=0): return I(text, "smf", wr, rd, prio)
def DSR(text, wr, rd, prio=0, tag=None): return I(text, "dsr", wr, rd, prio, tag)
def DSW(text, rd, wide=False, prio=0): return I(text, "dsw128" if wide else "dsw", (), rd, prio)
def VML(text, wr, rd, tag=None, prio=0): return I(text, "vml", wr, rd, prio, tag)
def VMS(text, rd, tag=None, prio=0): return I(text, "vms", (), rd, prio, tag)
def DMA(text, rd, tag=None, prio=0): return I(text, "dma", (), rd, prio, tag)
def BAR(): return I("s_barrier", "bar")
def MFMA8(text, wr, rd, first=False, prio=0): return I(text, "mfma8", wr, rd, prio, tag="noacc" if first else None)
```

```python
from asmlib import *
from layout import *
import gemm as G
from gemm import nop, L_STAGE

NSET_A, NSET = 4, 2
AFTER_INIT_ALL_T1_DONE = True
NOROLES = False
OUTSC = ''
TOUCH = False
tWS = 8
tW = 32
tS, tIDX, tSET, tNS = 33, 34, 35, 36
tT0, tT1, tT2, tT3 = 38, 39, 40, 41
tFLG = 42
tPOLL = 43
tSTG = 44
tOUT = 45
tWD = 12
tXD = 16
WS = "s[8:11]"
FL_CH, FL_A1, FL_R1, FL_F1, FL_F2, FL_R2 = 0, 1, 5, 7, 9, 11
D_Q, D_INIT = 128, 4
STAMP = False
DBGSTAMP = False
FL_FIN = 20
FINWORDS = True
FL_RELAY = 13

SLEEP = 8
DIRECT = True
DIRECT_F = True
FASTSEG = 62
def wait_flags(A, line_expr_sreg, n, bail, need_sreg):
    top = A.label("wf"); ok = A.label("wf_ok")
    A.e(f"s_cmp_lg_u32 s{tW}, 0", f"s_cbranch_scc1 {ok}")
    A.e(f"v_min_u32 v2, {n-1}, v1", "v_lshlrev_b32 v2, 2, v2")
    A.put(top)
    A.e(f"buffer_load_dword v3, v2, {WS}, s{line_expr_sreg} offen sc1", "s_waitcnt vmcnt(0)", f"v_cmp_gt_u32 vcc, s{need_sreg}, v3", f"s_cbranch_vccz {ok}",
        f"s_add_u32 s{tPOLL}, s{tPOLL}, 1", f"s_cmp_lt_u32 s{tPOLL}, 0x100000", f"s_cbranch_scc0 {ok}",
        f"s_cmp_ge_u32 s{tS}, {FASTSEG}", f"s_cbranch_scc1 {top}", f"s_sleep {SLEEP}", f"s_branch {top}")
    A.put(ok)
    A.e("s_barrier")

def set_flag(A, val_sreg):
    sk = A.label("sf")
    A.e(f"s_cmp_lg_u32 s{tW}, 0", f"s_cbranch_scc1 {sk}", "s_mov_b64 exec, 1", "v_mov_b32 v2, 0", f"v_mov_b32 v3, s{val_sreg}",
        f"buffer_store_dword v3, v2, {WS}, s{tFLG} offen sc1", "s_mov_b64 exec, -1")
    A.put(sk)

def wait_counter(A, off, cmp_val, bail, shift=0):
    top = A.label("wc"); ok = A.label("wc_ok")
    A.e(f"s_cmp_lg_u32 s{tW}, 0", f"s_cbranch_scc1 {ok}")
    A.put(top)
    A.e(f"v_mov_b32 v2, s{off}", "global_load_dword v3, v2, s[4:5] sc1", "s_waitcnt vmcnt(0)", "s_nop 0", f"v_readfirstlane_b32 s{tT3}, v3", "s_nop 3",
        f"s_lshr_b32 s{tT3}, s{tT3}, {shift}", f"s_and_b32 s{tT3}, s{tT3}, 0xffff", f"s_cmp_ge_u32 s{tT3}, {cmp_val}", f"s_cbranch_scc1 {ok}",
        f"s_add_u32 s{tPOLL}, s{tPOLL}, 1", f"s_cmp_lt_u32 s{tPOLL}, 0x100000", f"s_cbranch_scc0 {ok}", "s_sleep 32", f"s_branch {top}")
    A.put(ok)
    A.e("s_barrier")

def load_resident(A, nb_sreg, row_stride):
    top = A.label("res"); inner = A.label("resi")
    A.e("v_lshrrev_b32 v4, 4, v1", "v_and_b32 v5, 15, v1", "v_lshlrev_b32 v6, 2, v4", "v_xor_b32 v5, v5, v6", "v_lshlrev_b32 v5, 4, v5",
        f"v_mul_u32_u24 v4, {row_stride}, v4", "v_add_u32 v4, v4, v5")
    A.e(f"s_mul_i32 s{tT1}, s{tW}, {32*row_stride}", f"s_add_u32 s{tT0}, s{tT0}, s{tT1}", f"s_lshl_b32 s{tT1}, s{tW}, 13", f"s_mov_b32 s{tT2}, 0")
    A.put(top)
    A.e(f"s_mov_b32 s{tT3}, 0")
    A.put(inner)
    A.e(f"s_mov_b32 m0, s{tT1}", f"s_add_u32 s{tT3}, s{tT3}, 1", f"buffer_load_dwordx4 v4, s[{tWD}:{tWD+3}], s{tT0} offen lds",
        f"s_add_u32 s{tT0}, s{tT0}, {4*row_stride}", f"s_add_u32 s{tT1}, s{tT1}, 1024", f"s_cmp_lt_u32 s{tT3}, 8", f"s_cbranch_scc1 {inner}")
    A.e(f"s_add_u32 s{tT0}, s{tT0}, {96*row_stride}", f"s_add_u32 s{tT1}, s{tT1}, {32768-8192}", f"s_add_u32 s{tT2}, s{tT2}, 1", f"s_cmp_lt_u32 s{tT2}, s{nb_sreg}", f"s_cbranch_scc1 {top}")
    A.e("s_waitcnt vmcnt(0)", "s_barrier")

vL = 1
vTRW = 8
vXR = 10
vLIN16 = 14
def gemm_consts(A):
    A.e("v_lshrrev_b32 v2, 4, v1", "v_and_b32 v3, 15, v1", "v_lshrrev_b32 v3, 2, v3", "v_and_b32 v4, 3, v1",
        "v_lshrrev_b32 v5, 1, v2", "v_lshlrev_b32 v5, 3, v5", "v_add_u32 v5, v5, v3", "v_lshlrev_b32 v5, 8, v5",
        "v_and_b32 v6, 1, v2", "v_lshlrev_b32 v6, 1, v6", "v_lshrrev_b32 v7, 1, v4", "v_add_u32 v6, v6, v7",
        "v_and_b32 v7, 1, v4", "v_lshl_add_u32 v5, v7, 3, v5", "v_lshl_add_u32 v5, v6, 4, v5",
        f"v_xor_b32 v6, s{tW}, v3", f"v_lshl_add_u32 v{vTRW}, v6, 6, v5", f"v_add_u32 v{vTRW+1}, 0x10000, v{vTRW}")
    A.e("v_and_b32 v2, 31, v1", "v_and_b32 v3, 15, v1", "v_lshrrev_b32 v4, 5, v1", "v_xor_b32 v3, v3, v4", "v_lshlrev_b32 v3, 4, v3", "v_lshl_add_u32 v3, v2, 8, v3")
    for k in range(4): A.e(f"v_add_u32 v{vXR+k}, {L_STAGE + 8192*k}, v3")
    A.e(f"v_lshlrev_b32 v{vLIN16}, 4, v1", f"s_lshl_b32 s{tSTG}, s{tW}, 13", f"s_add_u32 s{tSTG}, s{tSTG}, {L_STAGE}")

def gemm32(A, nb, ACC=32, XF=48, WF=64):
    n = 0
    steps = [(b, kk) for b in range(nb) for kk in range(8)]
    def reads(i):
        b, kk = steps[i]; s_ = i % 4
        A.e(f"v_xor_b32 v{2+(i&1)}, {32*kk}, v{vXR+b}", f"ds_read_b128 {vr(XF+4*s_,4)}, v{2+(i&1)}")
        ad = vTRW + (1 if b >= 2 else 0); o = (b & 1) * 32768 + kk * 4096
        A.e(f"ds_read_b64_tr_b16 {vr(WF+4*s_,2)}, v{ad} offset:{o}", f"ds_read_b64_tr_b16 {vr(WF+4*s_+2,2)}, v{ad} offset:{o+1024}")
    for i in range(3): reads(i)
    for i in range(len(steps)):
        left = min(len(steps) - 1, i + 2) - i
        A.e(f"s_waitcnt lgkmcnt({3*left})")
        s_ = i % 4
        A.e(f"v_mfma_f32_32x32x16_bf16 {vr(ACC,16)}, {vr(WF+4*s_,4)}, {vr(XF+4*s_,4)}, {'0' if i == 0 else vr(ACC,16)}")
        if i + 3 < len(steps): reads(i + 3)
    nop(A, 12)

def store_tile(A, relu=False, ACC=32, D=48):
    A.e("s_barrier")
    for qp in range(2):
        base = ACC + 8 * qp; d = D + 4 * qp
        if relu:
            for k in range(8): A.e(f"v_max_f32 v{base+k}, 0, v{base+k}")
        A.e(f"v_cvt_pk_bf16_f32 v{d}, v{base}, v{base+1}", f"v_cvt_pk_bf16_f32 v{d+1}, v{base+2}, v{base+3}",
            f"v_cvt_pk_bf16_f32 v{d+2}, v{base+4}, v{base+5}", f"v_cvt_pk_bf16_f32 v{d+3}, v{base+6}, v{base+7}", "s_nop 1",
            f"v_permlane32_swap_b32 v{d}, v{d+2}", f"v_permlane32_swap_b32 v{d+1}, v{d+3}",
            f"s_lshl_b32 s{tT0}, s{tW}, 2", f"s_add_u32 s{tT0}, s{tT0}, {2*qp}", f"s_lshl_b32 s{tT0}, s{tT0}, 4",
            f"v_xor_b32 v2, s{tT0}, v{vXR}", f"ds_write_b128 v2, {vr(d,4)}")
    A.e("s_waitcnt lgkmcnt(0)", "s_barrier")
    A.e(f"s_lshl_b32 s{tT0}, s{tW}, 11", f"s_add_u32 s{tT1}, s{tT0}, {L_STAGE}", f"v_add_u32 v2, s{tT1}, v{vLIN16}",
        f"ds_read_b128 {vr(D,4)}, v2", f"ds_read_b128 {vr(D+4,4)}, v2 offset:1024", f"s_add_u32 s{tT0}, s{tT0}, s{tOUT}")
    A.e("s_waitcnt lgkmcnt(1)", f"buffer_store_dwordx4 {vr(D,4)}, v{vLIN16}, {WS}, s{tT0} offen sc1",
        "s_waitcnt lgkmcnt(0)", f"buffer_store_dwordx4 {vr(D+4,4)}, v{vLIN16}, {WS}, s{tT0} offen offset:1024 sc1",
        "s_waitcnt vmcnt(0)", "s_barrier")

def tstamp(A, k, seg=63):
    if STAMP:
        sk = A.label("ts")
        A.e(f"s_cmp_lg_u32 s{tS}, {seg}", f"s_cbranch_scc1 {sk}", f"s_cmp_lg_u32 s{tIDX}, 0", f"s_cbranch_scc1 {sk}", f"s_cmp_lg_u32 s{tW}, 0", f"s_cbranch_scc1 {sk}",
            "s_memrealtime s[96:97]", "s_waitcnt lgkmcnt(0)", f"v_mov_b32 v2, {0x04182100+4*k:#x}", "v_mov_b32 v3, s96", "global_store_dword v2, v3, s[6:7]")
        if DBGSTAMP and k == 6: A.e("v_mov_b32 v2, 60", "global_store_dword v2, v3, s[4:5]")
        A.put(sk)

def seg_loop_head(A, top, done):
    A.put(top)
    A.e(f"s_cmp_ge_u32 s{tS}, 64", f"s_cbranch_scc1 {done}")

def role_common(A, flag_line, nsets):
    A.e(f"s_mov_b32 s{tS}, s{tSET}", f"s_mov_b32 s{tNS}, {nsets}", f"s_mov_b32 s{tPOLL}, 0",
        f"s_add_u32 s{tFLG}, s{tSET}, {flag_line}", f"s_lshl_b32 s{tFLG}, s{tFLG}, 7", f"s_lshl_b32 s{tT0}, s{tIDX}, 2", f"s_add_u32 s{tFLG}, s{tFLG}, s{tT0}",
        f"s_add_u32 s{tFLG}, s{tFLG}, {FLG:#x}")

def flag_line_of(A, dst, base_line, nsets):
    if nsets == 1:
        A.e(f"s_mov_b32 s{dst}, {FLG + base_line*128:#x}")
    elif nsets in (2, 4):
        A.e(f"s_and_b32 s{dst}, s{tS}, {nsets-1}", f"s_add_u32 s{dst}, s{dst}, {base_line}", f"s_lshl_b32 s{dst}, s{dst}, 7", f"s_add_u32 s{dst}, s{dst}, {FLG:#x}")
    else:
        A.e(f"s_mul_hi_u32 s{dst}, s{tS}, 0x55555556", f"s_mul_i32 s{dst}, s{dst}, 3", f"s_sub_u32 s{dst}, s{tS}, s{dst}",
            f"s_add_u32 s{dst}, s{dst}, {base_line}", f"s_lshl_b32 s{dst}, s{dst}, 7", f"s_add_u32 s{dst}, s{dst}, {FLG:#x}")

def role_ffn(A, kind, bail):
    f1 = kind == "f1"
    A.c(f"==== tail role {kind}")
    role_common(A, FL_F1 if f1 else FL_F2, NSET)
    A.e(f"s_load_dwordx2 s[22:23], s[0:1], {64 if f1 else 72}", "s_waitcnt lgkmcnt(0)")
    srd(A, tWD, 22, 512 * 3584)
    gemm_consts(A)
    if f1:
        A.e(f"s_lshl_b32 s{tT0}, s{tIDX}, 8", "s_mov_b32 s46, 4")
        load_resident(A, 46, 3584)
    else:
        A.e(f"s_lshr_b32 s47, s{tIDX}, 2", "s_lshl_b32 s48, s47, 2", "s_cmp_eq_u32 s47, 3", "s_cselect_b32 s48, 11, s48", "s_cmp_ge_u32 s47, 2", "s_cselect_b32 s46, 3, 4",
            "s_lshl_b32 s49, s48, 17", f"s_and_b32 s{tT0}, s{tIDX}, 3", f"s_lshl_b32 s{tT0}, s{tT0}, 8", f"s_add_u32 s{tT0}, s{tT0}, s49")
        load_resident(A, 46, 1024)
    top = A.label("ff_top"); done = A.label("ff_done")
    seg_loop_head(A, top, done)
    direct = A.label("ff_direct"); staged = A.label("ff_staged")
    def src():
        if f1:
            A.e(f"s_lshl_b32 s{tT0}, s{tS}, 2", f"s_add_u32 s{tT0}, s{tT0}, s{tW}", f"s_lshl_b32 s{tT0}, s{tT0}, 13", f"s_add_u32 s{tT0}, s{tT0}, {HN:#x}")
        else:
            A.e(f"s_mul_i32 s{tT0}, s{tS}, 14", f"s_add_u32 s{tT0}, s{tT0}, s48", f"s_add_u32 s{tT0}, s{tT0}, s{tW}", f"s_lshl_b32 s{tT0}, s{tT0}, 13", f"s_add_u32 s{tT0}, s{tT0}, {FB:#x}")
    if DIRECT and DIRECT_F: A.e(f"s_cmp_ge_u32 s{tS}, {FASTSEG}", f"s_cbranch_scc1 {direct}")
    flag_line_of(A, tT0, FL_R1 if f1 else FL_F1, NSET)
    A.e(f"s_add_u32 s{tT1}, s{tS}, 1")
    wait_flags(A, tT0, 8 if f1 else 14, bail, tT1)
    skip = A.label("ff_skip")
    if not f1: A.e(f"s_cmp_ge_u32 s{tW}, s46", f"s_cbranch_scc1 {skip}")
    src()
    for half in range(2):
        A.e(f"s_add_u32 s{tT1}, s{tSTG}, {half*4096}", f"s_mov_b32 m0, s{tT1}", "s_nop 0")
        for n in range(4): A.e(f"buffer_load_dwordx4 v{vLIN16}, {WS}, s{tT0} offen offset:{n*1024} sc1 lds")
        if half == 0: A.e(f"s_add_u32 s{tT0}, s{tT0}, 4096")
    A.put(skip)
    A.e("s_waitcnt vmcnt(0)")
    if DIRECT and DIRECT_F:
        A.e(f"s_branch {staged}")
        A.put(direct)
        again = A.label("ff_again"); have = A.label("ff_have")
        if not f1: A.e(f"s_cmp_ge_u32 s{tW}, s46", f"s_cbranch_scc1 {staged}")
        src()
        A.e(f"s_add_u32 s{tT1}, s{tT0}, 4096")
        A.put(again)
        for n in range(8): A.e(f"buffer_load_dwordx4 {vr(64+4*n,4)}, v{vLIN16}, {WS}, s{tT0 if n < 4 else tT1} offen offset:{(n&3)*1024} sc1")
        A.e("s_waitcnt vmcnt(0)", "v_max3_u32 v2, v64, v65, v66")
        for k in range(67, 95, 2): A.e(f"v_max3_u32 v2, v2, v{k}, v{k+1}")
        A.e("v_max_u32 v2, v2, v95", "v_cmp_eq_u32 vcc, -1, v2", f"s_cbranch_vccz {have}", f"s_add_u32 s{tPOLL}, s{tPOLL}, 1", f"s_cmp_lt_u32 s{tPOLL}, 0x100000",
            f"s_cbranch_scc0 {have}", "s_sleep 2", f"s_branch {again}")
        A.put(have)
        A.e(f"v_add_u32 v2, s{tSTG}, v{vLIN16}")
        for n in range(8): A.e(f"ds_write_b128 v2, {vr(64+4*n,4)} offset:{n*1024}")
        A.e("s_waitcnt lgkmcnt(0)")
        A.put(staged)
    A.e("s_barrier")
    if f1:
        gemm32(A, 4)
        A.e(f"s_mul_i32 s{tOUT}, s{tS}, 14", f"s_add_u32 s{tOUT}, s{tOUT}, s{tIDX}", f"s_lshl_b32 s{tOUT}, s{tOUT}, 13", f"s_add_u32 s{tOUT}, s{tOUT}, {FB:#x}")
    else:
        three = A.label("ff3"); j = A.label("ffj")
        A.e("s_cmp_eq_u32 s46, 3", f"s_cbranch_scc1 {three}")
        gemm32(A, 4); A.e(f"s_branch {j}")
        A.put(three); gemm32(A, 3); A.put(j)
        A.e(f"s_lshl_b32 s{tOUT}, s{tS}, 4", f"s_add_u32 s{tOUT}, s{tOUT}, s{tIDX}", f"s_lshl_b32 s{tOUT}, s{tOUT}, 13", f"s_add_u32 s{tOUT}, s{tOUT}, {Q2:#x}")
    store_tile(A, relu=f1)
    A.e(f"s_add_u32 s{tT0}, s{tS}, 1")
    set_flag(A, tT0)
    tstamp(A, 4 if f1 else 5); tstamp(A, 12 if f1 else 13, 30)
    A.e(f"s_add_u32 s{tS}, s{tS}, s{tNS}", f"s_branch {top}")
    A.put(done)

def role_red(A, first, bail):
    A.c("==== tail role " + ("R1" if first else "R2"))
    role_common(A, FL_R1 if first else FL_R2, NSET)
    A.e(f"s_load_dwordx2 s[22:23], s[0:1], {0 if first else 80}", "s_waitcnt lgkmcnt(0)")
    srd(A, tXD, 22, 2 << 20)
    npart = 8 if first else 4
    A.e(f"s_lshl_b32 s46, s{tIDX}, 2", f"s_add_u32 s46, s46, s{tW}", "s_and_b32 s47, s46, 15",
        "v_and_b32 v4, 15, v1", "v_xor_b32 v4, s47, v4", "v_lshlrev_b32 v4, 4, v4", "v_lshrrev_b32 v5, 4, v1", "v_lshl_add_u32 v4, v5, 13, v4",
        "s_lshl_b32 s47, s46, 8", "v_add_u32 v4, s47, v4", "v_lshlrev_b32 v5, 4, v1", "s_mov_b32 s48, 0xffff0000")
    top = A.label("rd_top"); done = A.label("rd_done")
    seg_loop_head(A, top, done)
    direct = A.label("rd_direct"); again = A.label("rd_again"); have = A.label("rd_have")
    npr = npart * 4
    def loads():
        part = Q1 if first else Q2
        A.e(f"s_mul_i32 s{tT0}, s{tS}, {npart*4*8192}", f"s_add_u32 s{tT0}, s{tT0}, {part:#x}")
        for p in range(npart):
            A.e(f"buffer_load_dwordx4 {vr(16+4*p,4)}, v4, {WS}, s{tT0} offen sc1")
            if p < npart - 1: A.e(f"s_add_u32 s{tT0}, s{tT0}, {4*8192}")
        A.e(f"s_lshl_b32 s{tT1}, s{tS}, 5", f"s_add_u32 s{tT1}, s{tT1}, s46", f"s_lshl_b32 s{tT1}, s{tT1}, 10")
        if first:
            A.e(f"buffer_load_dwordx4 v[48:51], v5, s[{tXD}:{tXD+3}], s{tT1} offen")
        else:
            A.e(f"s_add_u32 s{tT2}, s{tT1}, {HB:#x}", f"buffer_load_dwordx4 v[48:51], v5, {WS}, s{tT2} offen sc1")
        A.e("s_waitcnt vmcnt(0)")
    if DIRECT: A.e(f"s_cmp_ge_u32 s{tS}, {FASTSEG}", f"s_cbranch_scc1 {direct}")
    if first: flag_line_of(A, tT0, FL_A1, NSET_A)
    else: flag_line_of(A, tT0, FL_F2, NSET)
    A.e(f"s_add_u32 s{tT1}, s{tS}, 1")
    wait_flags(A, tT0, 32 if first else 16, bail, tT1)
    loads()
    if DIRECT:
        A.e(f"s_branch {have}")
        A.put(direct)
        A.put(again)
        loads()
        regs_ = list(range(16, 16 + npr)) + ([] if first else [48, 49, 50, 51])
        A.e(f"v_max3_u32 v6, v{regs_[0]}, v{regs_[1]}, v{regs_[2]}")
        k = 3
        while k + 1 < len(regs_): A.e(f"v_max3_u32 v6, v6, v{regs_[k]}, v{regs_[k+1]}"); k += 2
        if k < len(regs_): A.e(f"v_max_u32 v6, v6, v{regs_[k]}")
        A.e("v_cmp_eq_u32 vcc, -1, v6", f"s_cbranch_vccz {have}", f"s_add_u32 s{tPOLL}, s{tPOLL}, 1", f"s_cmp_lt_u32 s{tPOLL}, 0x100000", f"s_cbranch_scc0 {have}", "s_sleep 2", f"s_branch {again}")
        A.put(have)
    for j in range(4):
        a = 52 + 2 * j
        A.e(f"v_lshlrev_b32 v{a}, 16, v{16+j}", f"v_and_b32 v{a+1}, s48, v{16+j}")
        for p in range(1, npart):
            A.e(f"v_lshlrev_b32 v6, 16, v{16+4*p+j}", f"v_and_b32 v7, s48, v{16+4*p+j}", f"v_add_f32 v{a}, v{a}, v6", f"v_add_f32 v{a+1}, v{a+1}, v7")
        A.e(f"v_cvt_pk_bf16_f32 v6, v{a}, v{a+1}", f"v_lshlrev_b32 v{a}, 16, v6", f"v_and_b32 v{a+1}, s48, v6",
            f"v_lshlrev_b32 v6, 16, v{48+j}", f"v_and_b32 v7, s48, v{48+j}", f"v_add_f32 v{a}, v{a}, v6", f"v_add_f32 v{a+1}, v{a+1}, v7",
            f"v_cvt_pk_bf16_f32 v{60+j}, v{a}, v{a+1}")
    if not first:
        A.e(f"buffer_store_dwordx4 v[60:63], v5, s[{tXD}:{tXD+3}], s{tT1} offen{OUTSC}")
    else:
        A.e(f"s_add_u32 s{tT2}, s{tT1}, {HB:#x}", f"buffer_store_dwordx4 v[60:63], v5, {WS}, s{tT2} offen sc1")
        A.c("layer norm of the bf16 row: two passes in registers")
        for j in range(4): A.e(f"v_lshlrev_b32 v{52+2*j}, 16, v{60+j}", f"v_and_b32 v{53+2*j}, s48, v{60+j}")
        def allsum(r):
            for rot in (1, 2, 4, 8): A.e("s_nop 1", f"v_add_f32_dpp v{r}, v{r}, v{r} row_ror:{rot} row_mask:0xf bank_mask:0xf")
            for sw in ("v_permlane16_swap_b32", "v_permlane32_swap_b32"):
                A.e("v_mov_b32 v7, " + f"v{r}", "s_nop 1", f"{sw} v{r}, v7", "s_nop 1", f"v_add_f32 v{r}, v{r}, v7")
        A.e("v_add_f32 v6, v52, v53")
        for k in range(54, 60): A.e(f"v_add_f32 v6, v6, v{k}")
        allsum(6)
        A.e("v_mul_f32 v6, 0x3b000000, v6")
        for k in range(52, 60): A.e(f"v_sub_f32 v{k}, v{k}, v6")
        A.e("v_mul_f32 v6, v52, v52")
        for k in range(53, 60): A.e(f"v_fmac_f32 v6, v{k}, v{k}")
        allsum(6)
        A.e("v_mul_f32 v6, 0x3b000000, v6", "v_add_f32 v6, 0x3727c5ac, v6", "v_rsq_f32 v6, v6", "s_nop 0")
        for j in range(4): A.e(f"v_mul_f32 v{52+2*j}, v{52+2*j}, v6", f"v_mul_f32 v{53+2*j}, v{53+2*j}, v6", f"v_cvt_pk_bf16_f32 v{64+j}, v{52+2*j}, v{53+2*j}")
        A.e(f"s_lshl_b32 s{tT2}, s{tS}, 15", f"s_add_u32 s{tT2}, s{tT2}, {HN:#x}", f"buffer_store_dwordx4 v[64:67], v4, {WS}, s{tT2} offen sc1")
        A.e("s_waitcnt vmcnt(0)", "s_barrier", f"s_add_u32 s{tT0}, s{tS}, 1")
        set_flag(A, tT0)
    tstamp(A, 3 if first else 6); tstamp(A, 11 if first else 14, 30)
    A.e(f"s_add_u32 s{tS}, s{tS}, s{tNS}", f"s_branch {top}")
    A.put(done)

def role_a1(A, bail):
    A.c("==== tail role A1: wave = head 4*hg + w, column block nc")
    role_common(A, FL_A1, NSET_A)
    A.e("s_load_dwordx2 s[22:23], s[0:1], 40", "s_waitcnt lgkmcnt(0)")
    srd(A, tWD, 22, 4 << 20)
    gemm_consts(A)
    A.e(f"s_lshr_b32 s47, s{tIDX}, 2", f"s_and_b32 s48, s{tIDX}, 3", "s_lshl_b32 s49, s47, 19", f"s_lshl_b32 s{tT0}, s48, 8", f"s_add_u32 s{tT0}, s{tT0}, s49", "s_mov_b32 s46, 4")
    load_resident(A, 46, 1024)
    A.e("s_lshl_b32 s50, s47, 2", f"s_add_u32 s50, s50, s{tW}")
    vI, vG = 15, 16
    A.e(f"v_and_b32 v{vI}, 15, v1", f"v_lshrrev_b32 v{vG}, 4, v1")
    SEL = 20
    A.e(f"v_and_b32 v2, 1, v{vI}", "v_mov_b32 v3, 0x3f80", "v_mov_b32 v4, 0x3f800000", "v_cmp_eq_u32 vcc, 1, v2", "s_nop 1", f"v_cndmask_b32 v{SEL}, v3, v4, vcc")
    for k in range(1, 4): A.e(f"v_mov_b32 v{SEL+k}, v{SEL}")
    vFR, vKW, vK0, vK1, vOWr = 17, 18, 19, 24, 25
    A.e(f"v_xor_b32 v2, v{vG}, v{vI}", "v_lshlrev_b32 v2, 4, v2", f"v_lshl_add_u32 v2, v{vI}, 8, v2", f"v_add_u32 v{vFR}, s{tSTG}, v2")
    A.e(f"v_lshlrev_b32 v2, 5, v{vI}", f"v_lshrrev_b32 v3, 3, v{vI}", "v_lshlrev_b32 v3, 7, v3", "v_xor_b32 v2, v2, v3", f"v_lshl_add_u32 v2, v{vG}, 3, v2", f"v_add_u32 v{vKW}, s{tSTG}, v2")
    A.e(f"v_lshlrev_b32 v2, 8, v{vG}", f"v_lshrrev_b32 v3, 2, v{vI}", "v_lshl_add_u32 v2, v3, 5, v2", f"v_and_b32 v3, 3, v{vI}", "v_lshl_add_u32 v2, v3, 3, v2",
        f"v_and_b32 v3, 1, v{vG}", "v_lshl_add_u32 v2, v3, 7, v2", f"v_add_u32 v{vK0}, s{tSTG}, v2", f"v_xor_b32 v{vK1}, 128, v{vK0}")
    A.e(f"v_lshrrev_b32 v2, 1, v{vG}", f"v_xor_b32 v2, v2, v{vI}", "v_lshlrev_b32 v2, 4, v2", f"v_and_b32 v3, 1, v{vG}", "v_lshl_add_u32 v2, v3, 3, v2",
        f"v_lshl_add_u32 v2, v{vI}, 8, v2", f"v_add_u32 v{vOWr}, s{tSTG}, v2")
    A.e("s_mov_b32 s51, 0x3e0293ee")
    QF, KF, VF, MF_, KM = 64, 96, 128, 160, 180
    A.e(f"v_mov_b32 v{MF_+16}, 0", f"v_mov_b32 v{MF_+17}, 0")
    top = A.label("a1_top"); done = A.label("a1_done")
    seg_loop_head(A, top, done)
    A.c("-- inputs that do not depend on the chain: q, k, v of the x rows")
    A.e(f"s_lshr_b32 s{tT0}, s{tS}, 2", f"s_lshl_b32 s{tT0}, s{tT0}, 2", f"s_add_u32 s{tT0}, s{tT0}, {D_Q}")
    if not AFTER_INIT_ALL_T1_DONE:
        wait_counter(A, tT0, 32, bail, shift=16)
        wait_counter(A, tT0, 64, bail, shift=0)
    A.e(f"s_lshl_b32 s52, s{tS}, 5", "s_add_u32 s52, s52, s50", "s_lshl_b32 s52, s52, 13")
    A.e(f"s_add_u32 s{tT0}, s52, {VT:#x}")
    for dt in range(8):
        if dt == 4: A.e(f"s_add_u32 s{tT0}, s{tT0}, 4096")
        A.e(f"buffer_load_dwordx4 {vr(VF+4*dt,4)}, v{vLIN16}, {WS}, s{tT0} offen offset:{(dt&3)*1024} sc1")
    for base, dst in ((KB, KF), (QB, QF)):
        A.e(f"s_add_u32 s{tT0}, s52, {base:#x}")
        for half in range(2):
            A.e(f"s_add_u32 s{tT1}, s{tSTG}, {half*4096}", f"s_mov_b32 m0, s{tT1}", "s_nop 0")
            for n in range(4): A.e(f"buffer_load_dwordx4 v{vLIN16}, {WS}, s{tT0} offen offset:{n*1024} sc1 lds")
            if half == 0: A.e(f"s_add_u32 s{tT0}, s{tT0}, 4096")
        A.e("s_waitcnt vmcnt(0)")
        for ks in range(4):
            A.e(f"v_xor_b32 v2, {64*ks}, v{vFR}")
            for T in range(2): A.e(f"ds_read_b128 {vr(dst+16*T+4*ks,4)}, v2 offset:{T*4096}")
        A.e("s_waitcnt lgkmcnt(0)")
    A.c("-- wait for the chain's k / v of this segment")
    tstamp(A, 0); tstamp(A, 8, 30)
    A.e(f"s_add_u32 s{tT0}, s{tSET}, {FL_RELAY}", f"s_lshl_b32 s{tT0}, s{tT0}, 7", f"s_add_u32 s{tT0}, s{tT0}, {FLG:#x}", f"s_add_u32 s{tT1}, s{tS}, 1")
    if FINWORDS:
        l63 = A.label("a1_63"); lj = A.label("a1_j")
        A.e(f"s_cmp_eq_u32 s{tS}, 63", f"s_cbranch_scc1 {l63}")
        wait_flags(A, tT0, 1, bail, tT1)
        A.e(f"s_branch {lj}")
        A.put(l63)
        A.e(f"s_lshl_b32 s{tT0}, s47, 4", f"s_add_u32 s{tT0}, s{tT0}, {FLG + FL_FIN*128:#x}", f"s_mov_b32 s{tT1}, 1")
        wait_flags(A, tT0, 4, bail, tT1)
        A.put(lj)
    else:
        wait_flags(A, tT0, 1, bail, tT1)
    tstamp(A, 1); tstamp(A, 9, 30)
    A.e(f"s_add_u32 s{tT0}, s52, {KV:#x}")
    for w in range(4):
        if w == 2: A.e(f"s_add_u32 s{tT0}, s{tT0}, 4096")
        A.e(f"buffer_load_dwordx4 {vr(MF_+4*w,4)}, v{vLIN16}, {WS}, s{tT0} offen offset:{(w&1)*2048} sc1")
    A.e("s_waitcnt vmcnt(0)")
    for w in range(4):
        A.e(f"ds_write_b32 v{vKW}, v{MF_+4*w+1} offset:{w*1024}", f"ds_write_b32 v{vKW}, v{MF_+4*w+3} offset:{w*1024+512}")
    A.e("s_waitcnt lgkmcnt(0)")
    for ks in range(4):
        A.e(f"ds_read_b64_tr_b16 {vr(KM+4*ks,2)}, v{vK0} offset:{ks*1024}", f"ds_read_b64_tr_b16 {vr(KM+4*ks+2,2)}, v{vK1} offset:{ks*1024}")
    def SA(Tq, T): return 200 + 12 * Tq + 4 * T
    for Tq in range(2):
        for T in range(2):
            if T == 1 and Tq == 0: continue
            for ks in range(4):
                A.e(f"v_mfma_f32_16x16x32_bf16 {vr(SA(Tq,T),4)}, {vr(KF+16*T+4*ks,4)}, {vr(QF+16*Tq+4*ks,4)}, {'0' if ks == 0 else vr(SA(Tq,T),4)}")
    A.e("s_waitcnt lgkmcnt(0)")
    for Tq in range(2):
        for ks in range(4):
            A.e(f"v_mfma_f32_16x16x32_bf16 {vr(SA(Tq,2),4)}, {vr(KM+4*ks,4)}, {vr(QF+16*Tq+4*ks,4)}, {'0' if ks == 0 else vr(SA(Tq,2),4)}")
    A.e(f"v_lshlrev_b32 v5, 2, v{vG}", "v_mov_b32 v7, 0xff800000")
    nop(A, 7)
    for r in range(4):
        A.e(f"v_add_u32 v6, {r}, v5", f"v_cmp_le_u32 vcc, v6, v{vI}", "s_nop 1", f"v_cndmask_b32 v{SA(0,0)+r}, v7, v{SA(0,0)+r}, vcc", f"v_cndmask_b32 v{SA(1,1)+r}, v7, v{SA(1,1)+r}, vcc")
    PXb = 32
    for Tq in range(2):
        vals = [SA(Tq, 0) + r for r in range(4)] + ([SA(1, 1) + r for r in range(4)] if Tq == 1 else []) + [SA(Tq, 2), SA(Tq, 2) + 1]
        A.e(f"v_max_f32 v5, v{vals[0]}, v{vals[1]}")
        for x in vals[2:]: A.e(f"v_max_f32 v5, v5, v{x}")
        for sw in ("v_permlane16_swap_b32", "v_permlane32_swap_b32"):
            A.e("v_mov_b32 v6, v5", "s_nop 1", f"{sw} v5, v6", "s_nop 1", "v_max_f32 v5, v5, v6")
        A.e("v_mul_f32 v5, s51, v5")
        for x in vals: A.e(f"v_fma_f32 v{x}, v{x}, s51, -v5")
        for x in vals: A.e(f"v_exp_f32 v{x}, v{x}")
        A.e("s_nop 0")
        PX = PXb + 8 * Tq; PM = PX + 4
        A.e(f"v_cvt_pk_bf16_f32 v{PX}, v{SA(Tq,0)}, v{SA(Tq,0)+1}", f"v_cvt_pk_bf16_f32 v{PX+1}, v{SA(Tq,0)+2}, v{SA(Tq,0)+3}")
        if Tq == 1: A.e(f"v_cvt_pk_bf16_f32 v{PX+2}, v{SA(1,1)}, v{SA(1,1)+1}", f"v_cvt_pk_bf16_f32 v{PX+3}, v{SA(1,1)+2}, v{SA(1,1)+3}")
        else: A.e(f"v_mov_b32 v{PX+2}, 0", f"v_mov_b32 v{PX+3}, 0")
        A.e(f"v_cvt_pk_bf16_f32 v{PM}, v{SA(Tq,2)}, v{SA(Tq,2)+1}", f"v_mov_b32 v{PM+1}, 0", f"v_mov_b32 v{PM+2}, 0", f"v_mov_b32 v{PM+3}, 0")
    A.e("s_nop 1")
    OA, LA = 64, 48
    for Tq in range(2):
        PX = PXb + 8 * Tq; PM = PX + 4
        A.e(f"v_mfma_f32_16x16x32_bf16 {vr(LA+4*Tq,4)}, {vr(SEL,4)}, {vr(PX,4)}, 0")
        for dt in range(8): A.e(f"v_mfma_f32_16x16x32_bf16 {vr(OA+32*Tq+4*dt,4)}, {vr(VF+4*dt,4)}, {vr(PX,4)}, 0")
        A.e(f"v_mfma_f32_16x16x32_bf16 {vr(LA+4*Tq,4)}, {vr(SEL,4)}, {vr(PM,4)}, {vr(LA+4*Tq,4)}")
        for dt in range(8):
            A.e(f"v_mfma_f32_16x16x32_bf16 {vr(OA+32*Tq+4*dt,4)}, {vr(MF_+2*dt,4)}, {vr(PM,4)}, {vr(OA+32*Tq+4*dt,4)}")
    nop(A, 9)
    for Tq in range(2):
        L = LA + 4 * Tq
        A.e(f"v_add_f32 v{L}, v{L}, v{L+1}", f"v_rcp_f32 v{L}, v{L}", "s_nop 0")
        for dt in range(8):
            r = OA + 32 * Tq + 4 * dt
            for k in range(4): A.e(f"v_mul_f32 v{r+k}, v{r+k}, v{L}")
            A.e(f"v_cvt_pk_bf16_f32 v{r}, v{r}, v{r+1}", f"v_cvt_pk_bf16_f32 v{r+1}, v{r+2}, v{r+3}", f"v_xor_b32 v5, {32*dt}, v{vOWr}", f"ds_write_b64 v5, {vr(r,2)} offset:{Tq*4096}")
    A.e("s_waitcnt lgkmcnt(0)", "s_barrier")
    gemm32(A, 4)
    A.e(f"s_lshl_b32 s{tOUT}, s{tS}, 5", f"s_add_u32 s{tOUT}, s{tOUT}, s{tIDX}", f"s_lshl_b32 s{tOUT}, s{tOUT}, 13", f"s_add_u32 s{tOUT}, s{tOUT}, {Q1:#x}")
    store_tile(A)
    A.e(f"s_add_u32 s{tT0}, s{tS}, 1")
    set_flag(A, tT0)
    tstamp(A, 2); tstamp(A, 10, 30)
    A.e(f"s_add_u32 s{tS}, s{tS}, s{tNS}", f"s_branch {top}")
    A.put(done)

def role_relay(A, bail):
    A.c("==== tail role relay")
    top = A.label("rl_top"); done = A.label("rl_done"); same = A.label("rl_same")
    A.e(f"s_cmp_lg_u32 s{tW}, 0", f"s_cbranch_scc1 {done}", "s_mov_b64 exec, 1", "v_mov_b32 v2, 0", "s_mov_b32 s46, 0", f"s_mov_b32 s{tPOLL}, 0", f"s_mov_b32 s47, {FLG:#x}")
    A.put(top)
    A.e(f"buffer_load_dword v3, v2, {WS}, s47 offen sc1", "s_waitcnt vmcnt(0)", "s_nop 0", "v_readfirstlane_b32 s48, v3", "s_nop 3", "s_cmp_eq_u32 s48, s46", f"s_cbranch_scc1 {same}")
    A.e("s_mov_b32 s46, s48")
    for k in range(NSET_A): A.e(f"s_mov_b32 s49, {FLG + (FL_RELAY + k)*128:#x}", f"buffer_store_dword v3, v2, {WS}, s49 offen sc1")
    A.e(f"s_cmp_ge_u32 s46, {63 if FINWORDS else 64}", f"s_cbranch_scc1 {done}")
    A.put(same)
    A.e(f"s_add_u32 s{tPOLL}, s{tPOLL}, 1", f"s_cmp_lt_u32 s{tPOLL}, 0x400000", f"s_cbranch_scc0 {done}", "s_sleep 1", f"s_branch {top}")
    A.put(done)
    A.e("s_mov_b64 exec, -1")

def tail_dispatch(A, end, widx):
    A.c("==== streaming tail: role by worker index")
    A.e("v_mbcnt_lo_u32_b32 v1, -1, 0", "v_mbcnt_hi_u32_b32 v1, -1, v1")
    srd(A, tWS, 6, WS_BYTES)
    labs = {k: A.label("role_" + k) for k in ("a1", "f1", "f2", "r1", "r2", "rl")}
    o = 32 * NSET_A
    ranges = [("a1", 0, 32, NSET_A), ("f1", o, 14, NSET), ("f2", o + 28, 16, NSET), ("r1", o + 60, 8, NSET), ("r2", o + 76, 8, NSET), ("rl", o + 92, 1, 1)]
    go = A.label("role_go")
    A.e("s_mov_b32 s53, 9")
    for rid, (k, lo, n, ns) in enumerate(ranges):
        nx = A.label("rnx")
        A.e(f"s_cmp_lt_u32 s{widx}, {lo}", f"s_cbranch_scc1 {nx}", f"s_cmp_ge_u32 s{widx}, {lo + n*ns}", f"s_cbranch_scc1 {nx}")
        A.e(f"s_mov_b32 s53, {rid}", f"s_sub_u32 s{tT0}, s{widx}, {lo}", f"s_mov_b32 s{tSET}, 0", f"s_mov_b32 s{tIDX}, s{tT0}")
        for k2 in range(1, ns):
            sk = A.label("rs")
            A.e(f"s_cmp_lt_u32 s{tT0}, {n*k2}", f"s_cbranch_scc1 {sk}", f"s_mov_b32 s{tSET}, {k2}", f"s_sub_u32 s{tIDX}, s{tT0}, {n*k2}")
            A.put(sk)
        A.put(nx)
    lines = [FL_A1, FL_F1, FL_F2, FL_R1, FL_R2]
    noz = A.label("noz"); rz = A.label("relayz"); afterz = A.label("afterz")
    A.e("s_cmp_eq_u32 s53, 9", f"s_cbranch_scc1 {noz}", "s_cmp_eq_u32 s53, 5", f"s_cbranch_scc1 {rz}")
    A.e(f"s_mov_b32 s{tT0}, {lines[0]}")
    for rid in range(1, 5): A.e(f"s_cmp_eq_u32 s53, {rid}", f"s_cselect_b32 s{tT0}, {lines[rid]}, s{tT0}")
    A.e(f"s_add_u32 s{tFLG}, s{tSET}, s{tT0}", f"s_lshl_b32 s{tFLG}, s{tFLG}, 7", f"s_lshl_b32 s{tT0}, s{tIDX}, 2", f"s_add_u32 s{tFLG}, s{tFLG}, s{tT0}",
        f"s_add_u32 s{tFLG}, s{tFLG}, {FLG:#x}", f"s_mov_b32 s{tT0}, 0")
    set_flag(A, tT0)
    A.e(f"s_branch {noz}")
    A.put(rz)
    for k in range(NSET_A):
        A.e(f"s_mov_b32 s{tFLG}, {FLG + (FL_RELAY + k)*128:#x}", f"s_mov_b32 s{tT0}, 0")
        set_flag(A, tT0)
    A.put(noz)
    if DIRECT:
        A.c("all-ones fill of the buffers of the last two segments: 1 KiB pieces, two per wave")
        regions = [(Q1 + FASTSEG*262144, (64-FASTSEG)*256), (HN + FASTSEG*32768, (64-FASTSEG)*32), (HB + FASTSEG*32768, (64-FASTSEG)*32),
                   (FB + FASTSEG*14*8192, (64-FASTSEG)*112), (Q2 + FASTSEG*131072, (64-FASTSEG)*128)]
        total = sum(n for _, n in regions)
        assert total <= 2 * 896
        A.e("v_mov_b32 v4, -1", "v_mov_b32 v5, -1", "v_mov_b32 v6, -1", "v_mov_b32 v7, -1", "v_lshlrev_b32 v8, 4, v1",
            f"s_lshl_b32 s46, s{widx}, 2", f"s_add_u32 s46, s46, s{tW}")
        for rnd in range(2):
            A.e("s_mov_b32 s47, 0x70000000", "s_mov_b32 s48, s46")
            for base, n in regions:
                nx = A.label("fill")
                A.e(f"s_cmp_lt_u32 s48, {n}", f"s_cbranch_scc0 {nx}", "s_lshl_b32 s47, s48, 10", f"s_add_u32 s47, s47, {base:#x}", "s_mov_b32 s48, 0x10000000")
                A.put(nx)
                A.e(f"s_sub_u32 s48, s48, {n}")
            A.e(f"buffer_store_dwordx4 v[4:7], v8, {WS}, s47 offen sc1", "s_add_u32 s46, s46, 896")
    sk = A.label("ini")
    A.e("s_waitcnt vmcnt(0)", "s_barrier", f"s_cmp_lg_u32 s{tW}, 0", f"s_cbranch_scc1 {sk}", "s_mov_b64 exec, 1", f"v_mov_b32 v2, {D_INIT}", "v_mov_b32 v3, 1",
        "global_atomic_add v2, v3, s[4:5]", "s_mov_b64 exec, -1")
    A.put(sk)
    A.e("s_cmp_eq_u32 s53, 9", f"s_cbranch_scc1 {end}")
    if TOUCH:
        A.c("address-translation warm-up: one word per MiB of the workspace range used by the tail and of the output")
        A.e("v_lshlrev_b32 v2, 20, v1", f"buffer_load_dword v3, v2, {WS}, 0 offen sc1", "v_add_u32 v2, 0x4000000, v2", f"buffer_load_dword v3, v2, {WS}, 0 offen sc1",
            "v_add_u32 v2, 0x4000000, v2", f"buffer_load_dword v3, v2, {WS}, 0 offen sc1", "s_waitcnt vmcnt(0)")
    if NOROLES: A.e(f"s_branch {end}")
    A.e(f"s_mov_b32 s{tPOLL}, 0", f"s_mov_b32 s{tT0}, {D_INIT}")
    wait_counter(A, tT0, 256, end)
    for rid, (k, lo, n, ns) in enumerate(ranges):
        A.e(f"s_cmp_eq_u32 s53, {rid}", f"s_cbranch_scc1 {labs[k]}")
    A.put(labs["a1"]); role_a1(A, end); A.e(f"s_branch {end}")
    A.put(labs["f1"]); role_ffn(A, "f1", end); A.e(f"s_branch {end}")
    A.put(labs["f2"]); role_ffn(A, "f2", end); A.e(f"s_branch {end}")
    A.put(labs["r1"]); role_red(A, True, end); A.e(f"s_branch {end}")
    A.put(labs["r2"]); role_red(A, False, end); A.e(f"s_branch {end}")
    A.put(labs["rl"]); role_relay(A, end); A.e(f"s_branch {end}")
```

```python
from asmlib import *
from layout import *
import sys, chain, chain3, gemm, post, main1, t2
NAME = "sequential_preLN__memory_aug_recurrent_mem_tr__dense_activation_relu__prompt"
chain3.RSLAY = 1; chain3.RS_DELAY = 80; chain3.AG_DELAY = 30
chain3.WAIT_KV = main1.D_KV
for a in sys.argv:
    if a.startswith('rsd='): chain3.RS_DELAY = int(a[4:])
    if a.startswith('agd='): chain3.AG_DELAY = int(a[4:])
chain.TOTAL = "total" in sys.argv
def header():
    src = open(f"cdna_kernels/{NAME}.s.ref").read().split("\n")
    return [l for l in src[:src.index(next(x for x in src if x.startswith("; Override launch")))]]
TAIL = "tail" in sys.argv
main1.TAIL = TAIL; chain3.TAILFLAG = TAIL
t2.NOROLES = 'noroles' in sys.argv
t2.STAMP = 'total' in sys.argv
for a in sys.argv:
    if a.startswith('sleep='): t2.SLEEP = int(a[6:])
main1.NOWORK = 'nowork' in sys.argv
if main1.NOWORK: chain3.WAIT_KV = None
chain3.FINLINES = [t2.FL_RELAY + k for k in (3, 2, 1, 0)] + [0]
import sched
sched.VM_FIRST = 160; sched.VM_GAP = 96
for a in sys.argv:
    if a.startswith('gap='): sched.VM_GAP = int(a[4:])
    if a.startswith('first='): sched.VM_FIRST = int(a[6:])
chain3.TOUCH = 'touch' in sys.argv or 'touchc' in sys.argv; t2.TOUCH = 'touch' in sys.argv
for a in sys.argv:
    if a.startswith('thr='): chain3.ARRIVE2 = int(a[4:]); chain3.D_W2 = 20; main1.THROTTLE = 20
if 'slow' in sys.argv: main1.TEST_MODE = 'slow'
if 'surplus' in sys.argv: main1.TEST_MODE = 'surplus'; chain3.FORCE_SC1 = True
gemm.DROP = set(a[6:] for a in sys.argv if a.startswith('gdrop-'))
for a in sys.argv:
    if a.startswith('kxe='): chain3.KXEARLY = int(a[4:])
chain3.LATE_MODE = True; chain3.EARLYPF = True
main1.CODEPF = 'codepf' in sys.argv
if 'natural' in sys.argv: chain3.NATURAL = True; chain3.RS_DELAY = 0; chain3.AG_DELAY = 0
for a in sys.argv:
    if a.startswith('rsw='): chain3.RSW = int(a[4:])
    if a.startswith('rsd2='): chain3.RS_DELAY = int(a[5:])
    if a.startswith('agd2='): chain3.AG_DELAY = int(a[5:])
chain3.FINLINE = t2.FL_FIN if t2.FINWORDS else None
if 'nodirect' in sys.argv: t2.DIRECT = False
if 'directf' in sys.argv: t2.DIRECT_F = True
if 'nofinw' in sys.argv: t2.FINWORDS = False; chain3.FINLINE = None
chain3.DBGSTAMP = t2.DBGSTAMP = 'dbgstamp' in sys.argv
chain3.SLOT8 = 'slot8' in sys.argv
chain3.DROP = set(a[6:] for a in sys.argv if a.startswith('cdrop-'))
chain3.AG2 = 'ag2' in sys.argv
for a in sys.argv:
    if a.startswith('ag2gap='): chain3.AG2GAP = int(a[7:])
if 'outsc1' in sys.argv: t2.OUTSC = ' sc1'
if 'outnt' in sys.argv: t2.OUTSC = ' nt'
if 'wnt' in sys.argv: chain3.WNT = ' nt'
gemm.WARM = 'warm' in sys.argv
chain3.ILV = 'ilv' in sys.argv
chain3.ROT = 'rot' in sys.argv
chain3.RSX2 = 'rsx2' in sys.argv
for a in sys.argv:
    if a.startswith('rsprio='): chain3.RSPRIO = int(a[7:])
A = Asm()
for l in header(): A.raw(l)
launches = [("main_kernel", 256, LDS_BYTES), ("att_kernel", 512, 81920), ("wo_kernel", 256, 163840), ("red1_kernel", 512, 0),
            ("f1_kernel", 224, 163840), ("f2_kernel", 256, 163840), ("red2_kernel", 512, 0)]
if "mainonly" in sys.argv or TAIL: launches = launches[:1]
NAMEK = NAME + "_kernel"
if TAIL:
    A.raw(f"; @launch grid=(256,1,1) block=(256,1,1) lds={LDS_BYTES}")
else:
    for k, g, lds in launches: A.raw(f"; @launch kernel={k} grid=({g},1,1) block=(256,1,1) lds={lds}")
A.raw('.amdgcn_target "amdgcn-amd-amdhsa--gfx950"')
A.raw(".text")
main1.gen_main(A, NAMEK if TAIL else "main_kernel")
if not TAIL:
  post.att_kernel(A, "att_kernel")
if not TAIL:
  post.gemm_kernel(A, "wo_kernel", "wo")
  post.red_kernel(A, "red1_kernel", P1, 0, False, False)
  post.gemm_kernel(A, "f1_kernel", "f1")
  post.gemm_kernel(A, "f2_kernel", "f2")
  post.red_kernel(A, "red2_kernel", P2, 0, True, True)
A.raw('.section .rodata,"a"')
for k, v, a, s in ((NAMEK, 512, 256, 102),) if TAIL else (("main_kernel", 512, 256, 102), ("att_kernel", 192, 192, 102), ("wo_kernel", 256, 256, 102), ("red1_kernel", 48, 48, 40),
                ("f1_kernel", 256, 256, 102), ("f2_kernel", 256, 256, 102), ("red2_kernel", 48, 48, 40)):
    A.raw(kernel_desc(k, v, a, s))
out = [a[4:] for a in sys.argv if a.startswith("out=")]
open(out[0] if out else "full2.s", "w").write(A.text())
```
